```python
import torch

def _softmax(x, axis=-1):
    return torch.softmax(x, dim=axis)
def _gelu(x):
    return torch.nn.functional.gelu(x, approximate="tanh")
def _silu(x):
    return torch.nn.functional.silu(x)
def _sigmoid(x):
    return torch.sigmoid(x)
def _layernorm(x, axis=-1, eps=1e-5):
    m = x.mean(dim=axis, keepdim=True)
    v = x.var(dim=axis, keepdim=True, unbiased=False)
    return (x - m) / torch.sqrt(v + eps)
def _scatter_add(tgt, idx, src, axis=0):
    return tgt.clone().index_add_(axis, idx, src)
def _segment_sum(src, seg, n):
    out = torch.zeros((n,) + src.shape[1:], dtype=src.dtype)
    return out.index_add_(0, seg, src)
def _pad(x, pw):
    flat = tuple(v for pair in reversed(pw) for v in pair)
    return torch.nn.functional.pad(x, flat)

kernel_name = 'interleave_layers__sliding_block__mixer_channel_mlp__prompt'

def setup_inputs():

    _w = (lambda a: (lambda t: t.to(torch.bfloat16) if t.is_floating_point() else t)(torch.as_tensor(a)))
    def _A_setup():
        B, S, D = 1, 2048, 448
        return {
            "x": _w((lambda *s: torch.randn(*s, dtype=torch.bfloat16) * 0.05)(B, S, D)),
            "wqkv": _w((lambda *s: torch.randn(*s, dtype=torch.bfloat16) * 0.05)(D, 3 * D)),
            "wo": _w((lambda *s: torch.randn(*s, dtype=torch.bfloat16) * 0.05)(D, D)),
        }
    _A_in = _A_setup()

    def _B_setup():
        B, S, D, F = 1, 2048, 448, 1792
        return {
            "x": _w((lambda *s: torch.randn(*s, dtype=torch.bfloat16) * 0.05)(B, S, D)),
            "w1": _w((lambda *s: torch.randn(*s, dtype=torch.bfloat16) * 0.8)(D, F) * (D ** -0.5)),
            "b1": _w((lambda *s: torch.randn(*s, dtype=torch.bfloat16) * 0.8)(F)),
            "w2": _w((lambda *s: torch.randn(*s, dtype=torch.bfloat16) * 0.8)(F, D) * (F ** -0.5)),
            "b2": _w((lambda *s: torch.randn(*s, dtype=torch.bfloat16) * 0.4)(D)),
        }
    _B_in = _B_setup()

    return {
        "A_x": _A_in["x"],
        "A_wqkv": _A_in["wqkv"],
        "A_wo": _A_in["wo"],
        "B_x": _B_in["x"],
        "B_w1": _B_in["w1"],
        "B_b1": _B_in["b1"],
        "B_w2": _B_in["w2"],
        "B_b2": _B_in["b2"],
    }

def reference(A_x, A_wqkv, A_wo, B_x, B_w1, B_b1, B_w2, B_b2):
    def _A_ref(x, wqkv, wo):
        B, S, D = x.shape
        H = 16; Dh = D // H; W = 256
        qkv = (lambda x, *d: x.permute(*d))((x @ wqkv).reshape(B, S, 3, H, Dh), 2, 0, 3, 1, 4)
        q, k, v = qkv[0], qkv[1], qkv[2]
        scores = torch.einsum("bhqd,bhkd->bhqk", q, k) * (Dh ** -0.5)
        idx = torch.arange(S)
        mask = (idx[:, None] - idx[None, :] >= 0) & (idx[:, None] - idx[None, :] < W)
        scores = torch.where(mask[None, None], scores, -1e9)
        p = _softmax(scores, axis=-1)
        o = torch.einsum("bhqk,bhkd->bhqd", p, v)
        return (lambda x, *d: x.permute(*d))(o, 0, 2, 1, 3).reshape(B, S, D) @ wo

    def _B_ref(x, w1, b1, w2, b2):
        y = _layernorm(x, axis=-1)
        h = _gelu(torch.einsum("bsd,df->bsf", y, w1) + b1)
        return torch.einsum("bsf,fd->bsd", h, w2) + b2

    x = A_x
    x = x + _A_ref(_layernorm(x, axis=-1), A_wqkv, A_wo)
    x = x + _B_ref(_layernorm(x, axis=-1), B_w1, B_b1, B_w2, B_b2)
    x = x + _A_ref(_layernorm(x, axis=-1), A_wqkv, A_wo)
    x = x + _B_ref(_layernorm(x, axis=-1), B_w1, B_b1, B_w2, B_b2)
    return x
```

```python
import re

REG_RE = re.compile(r'^(-|abs\(|\|)?([vsa])(\d+)\)?\|?$')
RNG_RE = re.compile(r'^(-|abs\(|\|)?([vsa])\[(\d+):(\d+)\]\)?\|?$')


def regs_of(op):
    op = op.strip()
    m = REG_RE.match(op)
    if m:
        return {(m.group(2), int(m.group(3)))}
    m = RNG_RE.match(op)
    if m:
        return {(m.group(2), i) for i in range(int(m.group(3)), int(m.group(4)) + 1)}
    if op == 'vcc':
        return {('s', 106), ('s', 107)}
    if op == 'vcc_lo':
        return {('s', 106)}
    if op == 'vcc_hi':
        return {('s', 107)}
    if op == 'exec':
        return {('s', 126), ('s', 127)}
    if op == 'm0':
        return {('s', 124)}
    return set()


TRANS = ('v_exp_f32', 'v_log_f32', 'v_rcp_f32', 'v_rsq_f32', 'v_sqrt_f32', 'v_sin_f32', 'v_cos_f32',
         'v_rcp_iflag_f32')


class Ins:
    __slots__ = ('text', 'op', 'ops', 'kind', 'wr', 'rd', 'rdA', 'rdC', 'passes', 'states', 'store_data', 'lanesel')

    def __init__(self, text):
        self.text = text
        t = text.split(';')[0].strip()
        self.wr = set(); self.rd = set(); self.rdA = set(); self.rdC = set()
        self.passes = 0; self.states = 1; self.store_data = set(); self.lanesel = set()
        if not t or t.endswith(':') or t.startswith('.'):
            self.op = ''; self.ops = []; self.kind = 'label' if t.endswith(':') else 'none'; self.states = 0
            return
        parts = t.split(None, 1)
        self.op = op = parts[0]
        rest = parts[1] if len(parts) > 1 else ''
        ops = []; cur = ''; depth = 0
        for ch in rest:
            if ch in '[(':
                depth += 1
            if ch in '])':
                depth -= 1
            if ch == ',' and depth == 0:
                ops.append(cur.strip()); cur = ''
            else:
                cur += ch
        if cur.strip():
            ops.append(cur.strip())
        mods = []
        if ops:
            lp = ops[-1].split()
            if len(lp) > 1 and not ops[-1].startswith('hwreg'):
                ops[-1] = lp[0]; mods = lp[1:]
        self.ops = ops
        R = [regs_of(o) for o in ops]
        base = op.replace('_e32', '').replace('_e64', '')
        if op.startswith('v_mfma'):
            self.kind = 'mfma'
            self.wr = R[0]; self.rdA = R[1] | R[2]; self.rdC = R[3]; self.rd = self.rdA | self.rdC
            self.passes = 8 if '32x32x16' in op else 4
            if '32x32x16' not in op and '16x16x32' not in op:
                raise ValueError('unknown mfma ' + op)
        elif op.startswith('v_'):
            self.kind = 'trans' if base in TRANS else 'valu'
            if base.startswith('v_cmp'):
                self.wr = R[0]; self.rd = set().union(*R[1:])
                if base.startswith('v_cmpx'):
                    self.wr = self.wr | regs_of('exec')
            elif base.startswith('v_permlane') and 'swap' in base:
                self.kind = 'permlane'
                self.wr = R[0] | R[1]; self.rd = R[0] | R[1]
            elif base in ('v_readfirstlane_b32', 'v_readlane_b32'):
                self.kind = 'readlane'
                self.wr = R[0]; self.rd = set().union(*R[1:])
                if base == 'v_readlane_b32':
                    self.lanesel = R[2]
            elif base in ('v_add_co_u32', 'v_sub_co_u32', 'v_addc_co_u32', 'v_subb_co_u32', 'v_mad_u64_u32'):
                self.wr = R[0] | R[1]; self.rd = set().union(*R[2:])
            elif base in ('v_fmac_f32', 'v_dot2c_f32_bf16', 'v_pk_fmac_f16', 'v_writelane_b32'):
                self.wr = R[0]; self.rd = set().union(*R)
            elif base == 'v_nop':
                pass
            else:
                self.wr = R[0]; self.rd = set().union(*R[1:]) if len(R) > 1 else set()
                if base == 'v_cndmask_b32' and len(R) == 3:
                    self.rd |= regs_of('vcc')
            if 'dpp' in op or any(m.startswith(('row_', 'quad_perm', 'wave_')) for m in mods):
                self.kind = 'dpp'
        elif op.startswith(('buffer_load', 'global_load', 'flat_load')):
            self.kind = 'vmem'
            if 'lds' in mods or '_lds_' in op:
                self.kind = 'vmem_lds'
                self.rd = set().union(*R) | regs_of('m0')
            else:
                self.wr = R[0]; self.rd = set().union(*R[1:])
                if 'd16' in op:
                    self.rd |= R[0]
        elif op.startswith(('buffer_store', 'buffer_atomic')):
            self.kind = 'vmem'
            self.rd = set().union(*R)
            if 'x4' in op or 'x3' in op:
                self.store_data = R[0]
            if op.startswith('buffer_atomic') and 'sc0' in mods:
                self.wr = R[0]
        elif op.startswith(('global_store', 'global_atomic')):
            self.kind = 'vmem'
            self.rd = set().union(*R)
            if 'x4' in op or 'x3' in op:
                self.store_data = R[1]
            if op.startswith('global_atomic') and 'sc0' in mods:
                self.wr = R[0]; self.rd = set().union(*R[1:])
        elif op.startswith(('buffer_wbl2', 'buffer_inv')):
            self.kind = 'vmem'
        elif op.startswith('ds_'):
            self.kind = 'ds'
            if op.startswith(('ds_read', 'ds_bpermute', 'ds_permute', 'ds_swizzle')) or 'rtn' in op:
                self.wr = R[0]; self.rd = set().union(*R[1:])
            else:
                self.rd = set().union(*R)
        elif op == 's_nop':
            self.kind = 'salu'; self.states = int(ops[0], 0) + 1
        elif op.startswith(('s_branch', 's_cbranch', 's_endpgm', 's_setpc', 's_barrier')):
            self.kind = 'branch' if 'bar' not in op else 'salu'
        elif op.startswith('s_'):
            self.kind = 'smem' if op.startswith(('s_load', 's_buffer_load', 's_memtime', 's_memrealtime', 's_atomic')) else 'salu'
            if op.startswith(('s_cmp', 's_waitcnt', 's_sleep', 's_setprio', 's_bitcmp', 's_setreg')):
                self.rd = set().union(*R) if R else set()
            else:
                self.wr = R[0] if R else set(); self.rd = set().union(*R[1:]) if len(R) > 1 else set()
                if 'saveexec' in op:
                    self.wr = self.wr | regs_of('exec')
        else:
            raise ValueError('unknown instruction: ' + text)


VALU_KINDS = ('valu', 'trans', 'permlane', 'readlane', 'dpp')
XDL_D_RW = {4: 8, 8: 12}
XDL_D_COVL = {4: 6, 8: 10}
XDL_C_WAR = {4: 3, 8: 7}


def need(p, c):
    n = 0
    pv = p.kind in VALU_KINDS
    cv = c.kind in VALU_KINDS
    vec = lambda S: {r for r in S if r[0] in 'va'}
    sca = lambda S: {r for r in S if r[0] == 's'}
    if pv:
        w = p.wr
        if c.kind == 'mfma' and vec(w) & c.rd:
            n = max(n, 2)
        if c.kind == 'mfma' and (('s', 126) in w):
            n = max(n, 4)
        if c.kind == 'permlane' and vec(w) & c.rd:
            n = max(n, 2)
        if c.kind == 'dpp' and vec(w) & c.rd:
            n = max(n, 2)
        if c.kind == 'dpp' and ('s', 126) in w:
            n = max(n, 5)
        if c.kind == 'readlane' and vec(w) & c.rd:
            n = max(n, 1)
        if c.kind in ('readlane', 'permlane') and ('s', 126) in w:
            n = max(n, 4)
        if c.kind == 'readlane' and sca(w) & c.lanesel:
            n = max(n, 4)
        if c.kind in ('vmem', 'vmem_lds') and sca(w) & c.rd:
            n = max(n, 5)
        if cv and sca(w) & c.rd:
            n = max(n, 2)
        if p.kind == 'trans' and (cv or c.kind == 'mfma') and c.kind != 'trans' and vec(w) & c.rd:
            n = max(n, 1)
        if c.kind in ('salu', 'branch', 'smem') and sca(w) & c.rd:
            n = max(n, 1)
    if p.kind == 'salu' and ('s', 124) in p.wr and c.kind == 'vmem_lds':
        n = max(n, 1)
    if p.kind == 'vmem' and p.store_data:
        if cv and p.store_data & c.wr:
            n = max(n, 2)
        elif p.store_data & c.wr:
            n = max(n, 1)
    if p.kind == 'mfma':
        D = p.wr
        if c.kind == 'mfma':
            if D & c.rdA:
                n = max(n, XDL_D_RW[p.passes])
            if D & c.rdC:
                if not (c.rdC == D and c.passes == p.passes):
                    n = max(n, XDL_D_COVL[p.passes])
            elif D & c.wr:
                n = max(n, XDL_D_COVL[p.passes])
        elif cv or c.kind in ('vmem', 'vmem_lds', 'ds'):
            if D & (c.rd | c.wr):
                n = max(n, XDL_D_RW[p.passes])
        if cv and (p.rdC & c.wr):
            n = max(n, XDL_C_WAR[p.passes])
    return n


MAXLOOK = 20


class Asm:
    def __init__(self):
        self.ins = []
        self.out = []
        self.nlabel = 0

    def label(self, base='L'):
        self.nlabel += 1
        return f'{base}_{self.nlabel}'

    def raw(self, text):
        self.ins.append(Ins(''))
        self.ins[-1].text = text

    def __call__(self, text):
        for line in text.split('\n'):
            line = line.strip()
            if not line:
                continue
            self.ins.append(Ins(line))

    def flush(self):
        self.ins.append(Ins('s_nop 15'))

    def _pad(self, hist, c):
        dist = 0; worst = 0
        for p in reversed(hist):
            if dist >= MAXLOOK:
                break
            if p.states:
                n = need(p, c)
                if n - dist > worst:
                    worst = n - dist
            dist += p.states
        return worst

    def finish(self):
        out = []
        for c in self.ins:
            if c.states:
                k = self._pad(out, c)
                while k > 0:
                    m = min(k, 16)
                    out.append(Ins(f's_nop {m - 1}'))
                    k -= m
            out.append(c)
        labels = {}
        for i, c in enumerate(out):
            if c.kind == 'label':
                labels[c.text.split(':')[0].strip()] = i
        i = 0
        while i < len(out):
            c = out[i]
            if c.kind == 'branch' and c.op.startswith(('s_branch', 's_cbranch')):
                tgt = labels.get(c.ops[0])
                if tgt is None:
                    raise ValueError('unknown label ' + c.ops[0])
                hist = out[max(0, i - 40):i + 1]
                worst = 0; walked = []
                d = 0
                for t in out[tgt:tgt + 60]:
                    if d >= MAXLOOK:
                        break
                    if t.states:
                        k = self._pad(hist + walked, t)
                        worst = max(worst, k)
                    walked.append(t)
                    d += t.states
                    if t.op in ('s_branch', 's_endpgm'):
                        break
                if worst > 0:
                    k = worst
                    while k > 0:
                        m = min(k, 16)
                        out.insert(i, Ins(f's_nop {m - 1}'))
                        i += 1
                        k -= m
                    labels = {}
                    for j, cc in enumerate(out):
                        if cc.kind == 'label':
                            labels[cc.text.split(':')[0].strip()] = j
            i += 1
        self.out = out
        return '\n'.join(('' if (c.kind in ('label', 'none')) else '    ') + c.text for c in out) + '\n'
```

```python
import math, struct, sys
from asmlib import Asm

NAME = 'interleave_layers__sliding_block__mixer_channel_mlp__prompt'
KB = 1024
WQKV_F = 0x000000
WO_F = 0x150000
W1_F = 0x1C0000
W2_F = 0x348000
CS_QKV = 0x4D0000
CS_W1 = 0x4D2000
B1F = 0x4D4000
B2F = 0x4D6000
XSZ = 0x1C0000
STSZ = 0x70000
XF = [0x500000 + i * 0x200000 for i in range(4)]
ST = [0xD00000 + i * 0x80000 for i in range(4)]
QF = [0x1000000, 0x1800000]
KF = [0x1200000, 0x1A00000]
VF = [0x1400000, 0x1C00000]
OF = [0x1600000, 0x1E00000]
HF = [0x2000000, 0x2800000]
WS_BYTES = 0x10000000
EPS = 1e-5
LOG2E = 1.4426950408889634


def f32(x):
    return '0x%08x' % struct.unpack('<I', struct.pack('<f', x))[0]


def srd(a, d, lo, hi, nbytes):
    a(f's_mov_b32 s{d}, s{lo}')
    a(f's_and_b32 s{d+1}, s{hi}, 0xffff')
    a(f's_mov_b32 s{d+2}, {nbytes:#x}')
    a(f's_mov_b32 s{d+3}, 0x00020000')


def vr(b, n=4):
    return f'v[{b}:{b+n-1}]'


def ar(b, n=4):
    return f'a[{b}:{b+n-1}]'


class K:
    def __init__(self, a, name, nv, na=0, ns=96):
        self.a = a; self.name = name; self.nv = nv; self.na = na; self.ns = ns
        a.raw(f'.p2align 8\n.globl {name}\n.type {name},@function')
        a(f'{name}:')

    def desc(self):
        acc = (self.nv + 3) // 4 * 4
        return (f'.amdhsa_kernel {self.name}\n'
                f'  .amdhsa_next_free_vgpr {acc + self.na}\n'
                f'  .amdhsa_next_free_sgpr {self.ns}\n'
                f'  .amdhsa_accum_offset {acc}\n'
                f'  .amdhsa_group_segment_fixed_size 0\n'
                f'  .amdhsa_kernarg_size 88\n'
                f'  .amdhsa_user_sgpr_count 2\n'
                f'  .amdhsa_user_sgpr_kernarg_segment_ptr 1\n'
                f'  .amdhsa_system_sgpr_workgroup_id_x 1\n'
                f'.end_amdhsa_kernel\n')


def interleave(main, side, per):
    out = []; si = 0
    for m in main:
        out.append(m)
        if m.startswith('v_mfma'):
            for _ in range(per):
                if si < len(side):
                    out.append(side[si]); si += 1
    out += side[si:]
    return out


def gen_prep(a):
    k = K(a, 'prep_kernel', 96)
    NCS, NQ, NO, N1, N2, NX = 49, 84, 28, 98, 98, 112
    b_q = NCS; b_o = b_q + NQ; b_1 = b_o + NO; b_2 = b_1 + N1; b_x = b_2 + N2; b_end = b_x + NX
    k.grid = b_end
    a(f's_cmp_ge_u32 s2, {b_end}')
    a('s_cbranch_scc1 prep_done')
    a('s_load_dwordx8 s[16:23], s[0:1], 0')
    a('s_load_dwordx8 s[24:31], s[0:1], 32')
    a('s_load_dwordx2 s[32:33], s[0:1], 80')
    a('v_lshrrev_b32 v1, 6, v0')
    a('v_and_b32 v0, 63, v0')
    a('v_readfirstlane_b32 s3, v1')
    a('v_and_b32 v2, 31, v0')
    a('v_lshrrev_b32 v3, 5, v0')
    a('v_lshlrev_b32 v4, 4, v0')
    a('s_waitcnt lgkmcnt(0)')
    srd(a, 4, 32, 33, WS_BYTES)
    a(f's_cmp_lt_u32 s2, {b_q}')
    a('s_cbranch_scc1 prep_cs')
    a(f's_cmp_lt_u32 s2, {b_o}')
    a('s_cbranch_scc1 prep_q')
    a(f's_cmp_lt_u32 s2, {b_1}')
    a('s_cbranch_scc1 prep_o')
    a(f's_cmp_lt_u32 s2, {b_2}')
    a('s_cbranch_scc1 prep_1')
    a(f's_cmp_lt_u32 s2, {b_x}')
    a('s_cbranch_scc1 prep_2')
    a('s_branch prep_x')

    def gather(pitch, rowoff):
        for u in range(4):
            for j in range(8):
                T = rowoff(u, j) * pitch
                dst = 48 + 8 * u + j
                if T < 4096:
                    a(f'buffer_load_ushort v{dst}, v5, s[8:11], 0 offen offset:{T}')
                else:
                    a(f's_mov_b32 s40, {T}')
                    a(f'buffer_load_ushort v{dst}, v5, s[8:11], s40 offen')

    def pack():
        a('s_waitcnt vmcnt(0)')
        for d in range(16):
            a(f'v_lshl_or_b32 v{16 + d}, v{49 + 2 * d}, 16, v{48 + 2 * d}')

    pj = lambda j: j if j < 4 else j + 4

    def div(dst, src, d):
        M = (65536 + d - 1) // d
        a(f's_mul_i32 s{dst}, s{src}, {M}')
        a(f's_lshr_b32 s{dst}, s{dst}, 16')

    a('prep_q:')
    srd(a, 8, 18, 19, 448 * 1344 * 2)
    a(f's_sub_u32 s34, s2, {b_q}')
    a('s_lshl_b32 s34, s34, 2')
    a('s_add_u32 s34, s34, s3')
    div(35, 34, 7)
    a('s_mul_i32 s36, s35, 7')
    a('s_sub_u32 s36, s34, s36')
    div(37, 35, 3)
    a('s_mul_i32 s38, s37, 3')
    a('s_sub_u32 s38, s35, s38')
    a('s_mul_i32 s39, s38, 896')
    a('s_mul_i32 s41, s37, 56')
    a('s_add_u32 s39, s39, s41')
    a(f's_mul_i32 s41, s36, {64 * 2688}')
    a('s_add_u32 s39, s39, s41')
    a(f'v_mul_u32_u24 v5, {4 * 2688}, v3')
    a('v_lshl_add_u32 v5, v2, 1, v5')
    a('v_add_u32 v5, s39, v5')
    a('v_cmp_gt_u32 vcc, 28, v2')
    a('v_mov_b32 v6, 0x7ffffff0')
    a('v_cndmask_b32 v5, v6, v5, vcc')
    gather(2688, lambda u, j: 16 * u + pj(j))
    a('s_mul_i32 s39, s37, 28')
    a('s_lshl_b32 s41, s36, 2')
    a('s_add_u32 s39, s39, s41')
    a('s_mul_i32 s39, s39, 3')
    a('s_add_u32 s39, s39, s38')
    a('s_lshl_b32 s39, s39, 10')
    a(f's_add_u32 s39, s39, {WQKV_F}')
    pack()
    for u in range(4):
        a(f's_add_u32 s40, s39, {u * 3 * KB}')
        a(f'buffer_store_dwordx4 {vr(16 + 4 * u)}, v4, s[4:7], s40 offen')
    a('s_endpgm')

    a('prep_o:')
    srd(a, 8, 20, 21, 448 * 448 * 2)
    a(f's_sub_u32 s34, s2, {b_o}')
    a('s_lshl_b32 s34, s34, 2')
    a('s_add_u32 s34, s34, s3')
    a('s_and_b32 s36, s34, 7')
    a('s_lshr_b32 s37, s34, 3')
    a(f's_mul_i32 s39, s36, {56 * 896}')
    a('s_lshl_b32 s41, s37, 6')
    a('s_add_u32 s39, s39, s41')
    a(f'v_mul_u32_u24 v5, {4 * 896}, v3')
    a('v_lshl_add_u32 v5, v2, 1, v5')
    a('v_add_u32 v5, s39, v5')
    gather(896, lambda u, j: 28 * (u >> 1) + 16 * (u & 1) + pj(j))
    a('s_lshl_b32 s39, s37, 5')
    a('s_lshl_b32 s41, s36, 2')
    a('s_add_u32 s39, s39, s41')
    a('s_lshl_b32 s39, s39, 10')
    a(f's_add_u32 s39, s39, {WO_F}')
    a('v_cmp_eq_u32 vcc, 0, v3')
    pack()
    for u in (1, 3):
        for d in (2, 3):
            r = 16 + 4 * u + d
            a(f'v_cndmask_b32 v{r}, 0, v{r}, vcc')
    for u in range(4):
        a(f'buffer_store_dwordx4 {vr(16 + 4 * u)}, v4, s[4:7], s39 offen offset:{u * KB}')
    a('s_endpgm')

    a('prep_1:')
    srd(a, 8, 24, 25, 448 * 1792 * 2)
    a(f's_sub_u32 s34, s2, {b_1}')
    a('s_lshl_b32 s34, s34, 2')
    a('s_add_u32 s34, s34, s3')
    div(37, 34, 7)
    a('s_mul_i32 s36, s37, 7')
    a('s_sub_u32 s36, s34, s36')
    a(f's_mul_i32 s39, s36, {64 * 3584}')
    a('s_lshl_b32 s41, s37, 6')
    a('s_add_u32 s39, s39, s41')
    a(f'v_mul_u32_u24 v5, {4 * 3584}, v3')
    a('v_lshl_add_u32 v5, v2, 1, v5')
    a('v_add_u32 v5, s39, v5')
    gather(3584, lambda u, j: 16 * u + pj(j))
    a('s_lshl_b32 s39, s34, 12')
    a(f's_add_u32 s39, s39, {W1_F}')
    pack()
    for u in range(4):
        a(f'buffer_store_dwordx4 {vr(16 + 4 * u)}, v4, s[4:7], s39 offen offset:{u * KB}')
    a('s_endpgm')

    a('prep_2:')
    srd(a, 8, 28, 29, 1792 * 448 * 2)
    a(f's_sub_u32 s34, s2, {b_2}')
    a('s_lshl_b32 s34, s34, 2')
    a('s_add_u32 s34, s34, s3')
    div(37, 34, 28)
    a('s_mul_i32 s36, s37, 28')
    a('s_sub_u32 s36, s34, s36')
    a(f's_mul_i32 s39, s36, {64 * 896}')
    a('s_lshl_b32 s41, s37, 6')
    a('s_add_u32 s39, s39, s41')
    a(f'v_mul_u32_u24 v5, {4 * 896}, v3')
    a('v_lshl_add_u32 v5, v2, 1, v5')
    a('v_add_u32 v5, s39, v5')
    gather(896, lambda u, j: 16 * u + pj(j))
    a('s_lshl_b32 s39, s34, 12')
    a(f's_add_u32 s39, s39, {W2_F}')
    pack()
    for u in range(4):
        a(f'buffer_store_dwordx4 {vr(16 + 4 * u)}, v4, s[4:7], s39 offen offset:{u * KB}')
    a('s_endpgm')

    a('prep_x:')
    srd(a, 8, 16, 17, 2048 * 448 * 2)
    a(f's_sub_u32 s34, s2, {b_x}')
    a('s_lshl_b32 s34, s34, 2')
    a('s_add_u32 s34, s34, s3')
    div(37, 34, 7)
    a('s_mul_i32 s36, s37, 7')
    a('s_sub_u32 s36, s34, s36')
    a(f's_mul_i32 s39, s37, {32 * 896}')
    a('s_lshl_b32 s41, s36, 7')
    a('s_add_u32 s39, s39, s41')
    a('v_mul_u32_u24 v5, 896, v2')
    a('v_lshl_add_u32 v5, v3, 3, v5')
    for cc in range(2):
        for g in range(4):
            r = 16 + 8 * cc + 2 * g
            a(f'buffer_load_dwordx2 {vr(r, 2)}, v5, s[8:11], s39 offen offset:{64 * cc + 16 * g}')
    a('s_lshl_b32 s39, s34, 12')
    a(f's_add_u32 s39, s39, {XF[0]}')
    a('s_lshl_b32 s41, s34, 10')
    a(f's_add_u32 s41, s41, {ST[0]}')
    a('v_lshlrev_b32 v6, 3, v0')
    a('s_waitcnt vmcnt(0)')
    for u in range(4):
        a(f'buffer_store_dwordx4 {vr(16 + 4 * u)}, v4, s[4:7], s39 offen offset:{u * KB}')
    for cc in range(2):
        s, q = 40 + 2 * cc, 41 + 2 * cc
        a(f'v_mov_b32 v{s}, 0')
        a(f'v_mov_b32 v{q}, 0')
        for d in range(8):
            r = 16 + 8 * cc + d
            a(f'v_lshlrev_b32 v32, 16, v{r}')
            a(f'v_and_b32 v33, 0xffff0000, v{r}')
            a(f'v_add_f32 v{s}, v{s}, v32')
            a(f'v_fmac_f32 v{q}, v32, v32')
            a(f'v_add_f32 v{s}, v{s}, v33')
            a(f'v_fmac_f32 v{q}, v33, v33')
        a(f'buffer_store_dwordx2 {vr(s, 2)}, v6, s[4:7], s41 offen offset:{512 * cc}')
    a('s_endpgm')

    a('prep_cs:')
    a('s_cmp_lt_u32 s2, 21')
    a('s_cselect_b32 s8, s18, s24')
    a('s_cselect_b32 s9, s19, s25')
    a(f's_mov_b32 s34, {448 * 1344 * 2}')
    a(f's_mov_b32 s35, {448 * 1792 * 2}')
    a('s_cselect_b32 s10, s34, s35')
    a('s_mov_b32 s11, 0x00020000')
    a('s_movk_i32 s34, 2688')
    a('s_movk_i32 s35, 3584')
    a('s_cselect_b32 s36, s34, s35')
    a('s_cselect_b32 s37, 0, 21')
    a('s_sub_u32 s37, s2, s37')
    a('s_and_b32 s9, s9, 0xffff')
    a(f's_mov_b32 s34, {CS_QKV}')
    a(f's_mov_b32 s35, {CS_W1}')
    a('s_cmp_lt_u32 s2, 21')
    a('s_cselect_b32 s38, s34, s35')
    a('v_and_b32 v7, 7, v0')
    a('v_lshrrev_b32 v8, 3, v0')
    a('s_mul_i32 s39, s3, 112')
    a('v_add_u32 v9, s39, v8')
    a('v_mul_lo_u32 v5, v9, s36')
    a('v_lshl_add_u32 v5, v7, 4, v5')
    a('s_lshl_b32 s40, s37, 7')
    a('s_lshl_b32 s41, s36, 3')
    for i in range(14):
        a(f'buffer_load_dwordx4 {vr(16 + 4 * i)}, v5, s[8:11], s40 offen')
        if i < 13:
            a('s_add_u32 s40, s40, s41')
    for e in range(8):
        a(f'v_mov_b32 v{80 + e}, 0')
    for i in range(14):
        a(f's_waitcnt vmcnt({13 - i})')
        for d in range(4):
            r = 16 + 4 * i + d
            a(f'v_lshlrev_b32 v10, 16, v{r}')
            a(f'v_and_b32 v11, 0xffff0000, v{r}')
            a(f'v_add_f32 v{80 + 2 * d}, v{80 + 2 * d}, v10')
            a(f'v_add_f32 v{81 + 2 * d}, v{81 + 2 * d}, v11')
    a('s_lshl_b32 s39, s3, 3')
    a('v_add_u32 v9, s39, v8')
    a('v_lshlrev_b32 v9, 8, v9')
    a('v_lshl_add_u32 v9, v7, 5, v9')
    a('ds_write_b128 v9, v[80:83]')
    a('ds_write_b128 v9, v[84:87] offset:16')
    a('s_waitcnt lgkmcnt(0)')
    a('s_barrier')
    a('v_lshlrev_b32 v12, 2, v0')
    a('s_cmp_eq_u32 s3, 0')
    a('s_cbranch_scc0 prep_cs_b')
    for r in range(32):
        a(f'ds_read_b32 v{16 + r}, v12 offset:{256 * r}')
    a('s_waitcnt lgkmcnt(0)')
    for r in range(1, 32):
        a(f'v_add_f32 v16, v16, v{16 + r}')
    a('s_lshl_b32 s40, s37, 8')
    a('s_add_u32 s40, s40, s38')
    a('buffer_store_dword v16, v12, s[4:7], s40 offen')
    a('s_endpgm')
    a('prep_cs_b:')
    a('s_cmp_eq_u32 s3, 1')
    a('s_cbranch_scc0 prep_done')
    a('s_cmp_lt_u32 s2, 21')
    a('s_cselect_b32 s12, s30, s26')
    a('s_cselect_b32 s13, s31, s27')
    a('s_movk_i32 s34, 896')
    a('s_movk_i32 s35, 3584')
    a('s_cselect_b32 s14, s34, s35')
    a('s_mov_b32 s15, 0x00020000')
    a(f's_mov_b32 s34, {B2F}')
    a(f's_mov_b32 s35, {B1F}')
    a('s_cselect_b32 s38, s34, s35')
    a('s_cselect_b32 s39, 7, 28')
    a('s_and_b32 s13, s13, 0xffff')
    a('s_cmp_ge_u32 s37, s39')
    a('s_cbranch_scc1 prep_done')
    a('v_lshlrev_b32 v13, 1, v0')
    a('s_lshl_b32 s40, s37, 7')
    a('buffer_load_ushort v16, v13, s[12:15], s40 offen')
    a('s_lshl_b32 s40, s37, 8')
    a('s_add_u32 s40, s40, s38')
    a('s_waitcnt vmcnt(0)')
    a('v_lshlrev_b32 v16, 16, v16')
    a('buffer_store_dword v16, v12, s[4:7], s40 offen')
    a('prep_done:')
    a('s_endpgm')
    k.lds = 8192
    return k


def prologue(a, nwg, done):
    a(f's_cmp_ge_u32 s2, {nwg}')
    a(f's_cbranch_scc1 {done}')
    a('s_load_dwordx2 s[16:17], s[0:1], 80')
    a('s_load_dwordx2 s[18:19], s[0:1], 64')
    a('v_lshrrev_b32 v1, 6, v0')
    a('v_and_b32 v0, 63, v0')
    a('v_readfirstlane_b32 s3, v1')
    a('v_lshlrev_b32 v1, 4, v0')
    a('v_and_b32 v2, 31, v0')
    a('v_lshrrev_b32 v3, 5, v0')
    a('s_and_b32 s20, s2, 15')
    a('s_lshr_b32 s21, s2, 4')
    a('s_lshl_b32 s22, s20, 2')
    a('s_add_u32 s22, s22, s3')
    a('s_waitcnt lgkmcnt(0)')
    srd(a, 4, 16, 17, WS_BYTES)


def dma(a, n, s_g, s_l, goff, loff):
    i = 0
    while i < n:
        m = min(4, n - i)
        a(f's_add_u32 s40, s{s_g}, {goff + i * KB}')
        a(f's_add_u32 m0, s{s_l}, {loff + i * KB}')
        for u in range(m):
            a(f'buffer_load_dwordx4 v1, s[4:7], s40 offen offset:{u * KB} lds')
        i += m


def load_frags(a, n, dst, s_g, goff, reg=vr):
    i = 0
    while i < n:
        m = min(4, n - i)
        a(f's_add_u32 s41, s{s_g}, {goff + i * KB}')
        for u in range(m):
            a(f'buffer_load_dwordx4 {reg(dst + 4 * (i + u))}, v1, s[4:7], s41 offen offset:{u * KB}')
        i += m


def stats_reduce(a, sb, vmean, vvar, t0, t1):
    for i in range(1, 14):
        a(f'v_add_f32 v{sb}, v{sb}, v{sb + 2 * i}')
        a(f'v_add_f32 v{sb + 1}, v{sb + 1}, v{sb + 2 * i + 1}')
    a(f'v_mov_b32 v{t0}, v{sb}')
    a(f'v_mov_b32 v{t1}, v{sb + 1}')
    a(f'v_permlane32_swap_b32 v{sb}, v{t0}')
    a(f'v_permlane32_swap_b32 v{sb + 1}, v{t1}')
    a(f'v_add_f32 v{sb}, v{sb}, v{t0}')
    a(f'v_add_f32 v{sb + 1}, v{sb + 1}, v{t1}')
    a(f'v_mul_f32 v{vmean}, {f32(1.0 / 448)}, v{sb}')
    a(f'v_mul_f32 v{vvar}, {f32(1.0 / 448)}, v{sb + 1}')
    a(f'v_fma_f32 v{vvar}, -v{vmean}, v{vmean}, v{vvar}')
    a(f'v_max_f32 v{vvar}, 0, v{vvar}')


def out_stats(acc, s, q, first=True):
    L = []
    L.append(f'v_add_f32 v{s}, v{acc}, v{acc + 1}')
    L.append(f'v_mul_f32 v{q}, v{acc}, v{acc}')
    L.append(f'v_fmac_f32 v{q}, v{acc + 1}, v{acc + 1}')
    for i in range(2, 16):
        L.append(f'v_add_f32 v{s}, v{s}, v{acc + i}')
        L.append(f'v_fmac_f32 v{q}, v{acc + i}, v{acc + i}')
    return L


def gen_qkv(a, L):
    name = f'qkv{L}_kernel'
    k = K(a, name, 256)
    k.grid = 256; k.lds = 84 * KB + 4 * 256
    done = f'{name}_done'
    xin = 0 if L == 0 else 2
    prologue(a, 256, done)
    X = 8
    AQ, AK, AV = 120, 136, 152
    W = 168
    SB = 192
    CQ, CK = 220, 236
    CV = 252
    a(f's_mul_i32 s23, s21, {84 * KB}')
    a(f's_mul_i32 s24, s22, {28 * KB}')
    chunks = [(0, 8), (8, 8), (16, 8), (24, 4)]
    for (k0, n) in chunks:
        per = n * 3 // 4
        a(f's_mul_i32 s25, s3, {per * KB}')
        a('s_add_u32 s26, s25, s23')
        dma(a, per, 26, 25, WQKV_F + k0 * 3 * KB, k0 * 3 * KB)
        load_frags(a, n, X + 4 * k0, 24, XF[xin] + k0 * KB)
    def extras():
        a(f's_mul_i32 s27, s22, {14 * 512}')
        a('v_lshlrev_b32 v4, 3, v0')
        for i in range(14):
            if i % 8 == 0:
                a(f's_add_u32 s41, s27, {ST[xin] + i * 512}')
            a(f'buffer_load_dwordx2 {vr(SB + 2 * i, 2)}, v4, s[4:7], s41 offen offset:{(i % 8) * 512}')
        a('s_mul_i32 s27, s21, 112')
        a(f's_add_u32 s27, s27, {CS_QKV}')
        a('v_lshlrev_b32 v5, 4, v3')
        for g in range(4):
            a(f'buffer_load_dwordx4 {vr(CQ + 4 * g)}, v5, s[4:7], s27 offen offset:{32 * g}')
        for g in range(4):
            a(f'buffer_load_dwordx4 {vr(CK + 4 * g)}, v5, s[4:7], s27 offen offset:{1792 + 32 * g}')
        a('v_lshlrev_b32 v6, 2, v2')
        a(f'buffer_load_dword v{CV}, v6, s[4:7], s27 offen offset:3584')
    total0 = 49; total = 72
    cum = {0: 14, 8: 28, 16: 42, 24: 49}

    def rd(ks):
        b = W + 12 * (ks & 1)
        for p in range(3):
            off = (ks * 3 + p) * KB
            if off < 65536:
                a(f'ds_read_b128 {vr(b + 4 * p)}, v1 offset:{off}')
            else:
                a(f'ds_read_b128 {vr(b + 4 * p)}, v7 offset:{off - 65536}')
    a('v_add_u32 v7, 0x10000, v1')
    a(f's_waitcnt vmcnt({total0 - cum[0]})')
    a('s_barrier')
    rd(0)
    extras()
    for ks in range(28):
        if ks + 1 < 28:
            if ks + 1 in cum:
                a(f's_waitcnt vmcnt({total - cum[ks + 1]})')
                a('s_barrier')
            rd(ks + 1)
            a('s_waitcnt lgkmcnt(3)')
        else:
            a('s_waitcnt lgkmcnt(0)')
        b = W + 12 * (ks & 1)
        x = vr(X + 4 * ks)
        c = lambda r: '0' if ks == 0 else vr(r, 16)
        a(f'v_mfma_f32_32x32x16_bf16 {vr(AQ, 16)}, {vr(b)}, {x}, {c(AQ)}')
        a(f'v_mfma_f32_32x32x16_bf16 {vr(AK, 16)}, {vr(b + 4)}, {x}, {c(AK)}')
        a(f'v_mfma_f32_32x32x16_bf16 {vr(AV, 16)}, {x}, {vr(b + 8)}, {c(AV)}')
    a('s_waitcnt vmcnt(0)')
    MEAN, VAR, RSTD, RQ, RQP, T0, T1 = 8, 9, 10, 11, 12, 13, 14
    stats_reduce(a, SB, MEAN, VAR, T0, T1)
    a(f'v_add_f32 v{VAR}, {f32(EPS)}, v{VAR}')
    a(f'v_rsq_f32 v{RSTD}, v{VAR}')
    a(f'v_cmp_eq_u32 vcc, 0, v3')
    a(f'v_mul_f32 v{RQ}, {f32(28 ** -0.5 * LOG2E)}, v{RSTD}')
    a(f'v_mul_f32 v{T0}, v{MEAN}, v{RSTD}')
    a(f'v_cndmask_b32 v{RQP}, 0, v{RQ}, vcc')
    a(f'v_sub_f32 v{T0}, 0, v{T0}')
    a('s_lshl_b32 s27, s3, 8')
    a(f's_add_u32 s27, s27, {84 * KB}')
    a('v_lshl_add_u32 v15, v2, 2, s27')
    a(f'ds_write_b32 v15, v{RSTD}')
    a(f'ds_write_b32 v15, v{T0} offset:128')
    a('v_lshl_add_u32 v15, v3, 4, s27')
    a('s_waitcnt lgkmcnt(0)')
    VA, VB = 16, 32
    for g in range(4):
        a(f'ds_read_b128 {vr(VA + 4 * g)}, v15 offset:{32 * g}')
        a(f'ds_read_b128 {vr(VB + 4 * g)}, v15 offset:{128 + 32 * g}')
    PK = 48
    for i in range(16):
        a(f'v_fma_f32 v{AQ + i}, -v{MEAN}, v{CQ + i}, v{AQ + i}')
        a(f'v_fma_f32 v{AK + i}, -v{MEAN}, v{CK + i}, v{AK + i}')
    for i in range(16):
        a(f'v_mul_f32 v{AQ + i}, v{RQP if i >= 12 else RQ}, v{AQ + i}')
        a(f'v_mul_f32 v{AK + i}, v{RSTD}, v{AK + i}')
    for i in range(8):
        a(f'v_cvt_pk_bf16_f32 v{PK + i}, v{AQ + 2 * i}, v{AQ + 2 * i + 1}')
        a(f'v_cvt_pk_bf16_f32 v{PK + 8 + i}, v{AK + 2 * i}, v{AK + 2 * i + 1}')
    a('s_lshl_b32 s27, s21, 6')
    a('s_add_u32 s27, s27, s22')
    a('s_lshl_b32 s27, s27, 11')
    a(f's_add_u32 s28, s27, {QF[L]}')
    a(f's_add_u32 s29, s27, {KF[L]}')
    a(f's_add_u32 s30, s27, {VF[L]}')
    a(f'buffer_store_dwordx4 {vr(PK)}, v1, s[4:7], s28 offen')
    a(f'buffer_store_dwordx4 {vr(PK + 4)}, v1, s[4:7], s28 offen offset:1024')
    a(f'buffer_store_dwordx4 {vr(PK + 8)}, v1, s[4:7], s29 offen')
    a(f'buffer_store_dwordx4 {vr(PK + 12)}, v1, s[4:7], s29 offen offset:1024')
    a('v_cmp_gt_u32 vcc, 28, v2')
    a(f'v_cndmask_b32 v{CV}, 0, v{CV}, vcc')
    a('v_cmp_eq_u32 vcc, 28, v2')
    a(f'v_cndmask_b32_e64 v{T1}, 0, 1.0, vcc')
    a('s_waitcnt lgkmcnt(0)')
    for i in range(16):
        a(f'v_fma_f32 v{VB + i}, v{VB + i}, v{CV}, v{T1}')
    for i in range(16):
        a(f'v_fma_f32 v{AV + i}, v{AV + i}, v{VA + i}, v{VB + i}')
    for i in range(8):
        a(f'v_cvt_pk_bf16_f32 v{PK + 16 + i}, v{AV + 2 * i}, v{AV + 2 * i + 1}')
    a(f'buffer_store_dwordx4 {vr(PK + 16)}, v1, s[4:7], s30 offen')
    a(f'buffer_store_dwordx4 {vr(PK + 20)}, v1, s[4:7], s30 offen offset:1024')
    a(f'{done}:')
    a('s_endpgm')
    return k


def gen_att(a, L):
    name = f'att{L}_kernel'
    k = K(a, name, 200, na=144)
    k.grid = 256; k.lds = 0
    done = f'{name}_done'
    prologue(a, 256, done)
    Q = 8; S = 16; O = 160; M = 176; T = 177; NEG = 178; Z0 = 179; TT = 180; PK = 184
    a('s_lshl_b32 s23, s21, 6')
    a('s_add_u32 s24, s23, s22')
    a('s_lshl_b32 s24, s24, 11')
    load_frags(a, 2, Q, 24, QF[L])
    for j in range(9):
        a(f's_sub_i32 s25, s22, {8 - j}')
        a('s_max_i32 s25, s25, 0')
        a('s_add_u32 s25, s25, s23')
        a('s_lshl_b32 s25, s25, 11')
        load_frags(a, 2, 8 * j, 25, KF[L], reg=ar)
    for j in range(9):
        a(f's_sub_i32 s25, s22, {8 - j}')
        a('s_max_i32 s25, s25, 0')
        a('s_add_u32 s25, s25, s23')
        a('s_lshl_b32 s25, s25, 11')
        load_frags(a, 2, 72 + 8 * j, 25, VF[L], reg=ar)
    a(f's_mov_b32 s26, {f32(-1e30)}')
    a(f'v_mov_b32 v{NEG}, s26')
    a('s_cmp_ge_u32 s22, 8')
    a('s_cselect_b32 s27, 0, s26')
    a(f'v_mov_b32 v{Z0}, s27')
    a(f'v_lshlrev_b32 v{T}, 2, v3')
    a(f'v_sub_u32 v{T}, v2, v{T}')
    for i in range(16):
        c = 8 * (i >> 2) + (i & 3)
        a(f'v_cmp_le_i32 vcc, {c}, v{T}')
        a(f'v_cndmask_b32_e64 v{S + 128 + i}, v{NEG}, 0, vcc')
        a(f'v_cndmask_b32 v{S + i}, v{Z0}, v{NEG}, vcc')
    for j in range(1, 8):
        a(f's_cmp_ge_u32 s22, {8 - j}')
        a('s_cselect_b32 s27, 0, s26')
        for i in range(16):
            a(f'v_mov_b32 v{S + 16 * j + i}, s27')
    for j in range(9):
        a(f's_waitcnt vmcnt({18 + 2 * (8 - j)})')
        for s in range(2):
            a(f'v_mfma_f32_32x32x16_bf16 {vr(S + 16 * j, 16)}, {ar(8 * j + 4 * s)}, {vr(Q + 4 * s)}, {vr(S + 16 * j, 16)}')
        if j >= 1:
            jj = j - 1
            for i in range(0, 16, 2):
                if jj == 0 and i == 0:
                    a(f'v_max_f32 v{M}, v{S}, v{S + 1}')
                else:
                    a(f'v_max3_f32 v{M}, v{S + 16 * jj + i}, v{S + 16 * jj + i + 1}, v{M}')
    for i in range(0, 16, 2):
        a(f'v_max3_f32 v{M}, v{S + 128 + i}, v{S + 128 + i + 1}, v{M}')
    a(f'v_mov_b32 v{T}, v{M}')
    a(f'v_permlane32_swap_b32 v{M}, v{T}')
    a(f'v_max_f32 v{M}, v{M}, v{T}')
    a('s_waitcnt vmcnt(0)')
    for j in range(9):
        b = S + 16 * j
        for i in range(16):
            a(f'v_sub_f32 v{b + i}, v{b + i}, v{M}')
        for i in range(16):
            a(f'v_exp_f32 v{b + i}, v{b + i}')
        for i in range(8):
            a(f'v_cvt_pk_bf16_f32 v{b + i}, v{b + 2 * i}, v{b + 2 * i + 1}')
        for s in range(2):
            c = '0' if (j == 0 and s == 0) else vr(O, 16)
            a(f'v_mfma_f32_32x32x16_bf16 {vr(O, 16)}, {ar(72 + 8 * j + 4 * s)}, {vr(b + 4 * s)}, {c}')
    a(f'v_mov_b32 v{T}, v{O + 12}')
    a(f'v_mov_b32 v{TT}, v{O + 12}')
    a(f'v_permlane32_swap_b32 v{T}, v{TT}')
    a(f'v_rcp_f32 v{TT}, v{TT}')
    a('v_cmp_eq_u32 vcc, 0, v3')
    a(f'v_cndmask_b32 v{T}, 0, v{TT}, vcc')
    for i in range(16):
        a(f'v_mul_f32 v{O + i}, v{T if i >= 12 else TT}, v{O + i}')
    for i in range(8):
        a(f'v_cvt_pk_bf16_f32 v{PK + i}, v{O + 2 * i}, v{O + 2 * i + 1}')
    a('s_lshl_b32 s24, s22, 4')
    a('s_add_u32 s24, s24, s21')
    a('s_lshl_b32 s24, s24, 11')
    a(f's_add_u32 s24, s24, {OF[L]}')
    a(f'buffer_store_dwordx4 {vr(PK)}, v1, s[4:7], s24 offen')
    a(f'buffer_store_dwordx4 {vr(PK + 4)}, v1, s[4:7], s24 offen offset:1024')
    a(f'{done}:')
    a('s_endpgm')
    return k


def unpack_add(a, acc, src, t):
    for d in range(8):
        a(f'v_lshlrev_b32 v{t}, 16, v{src + d}')
        a(f'v_and_b32 v{t + 1}, 0xffff0000, v{src + d}')
        a(f'v_add_f32 v{acc + 2 * d}, v{acc + 2 * d}, v{t}')
        a(f'v_add_f32 v{acc + 2 * d + 1}, v{acc + 2 * d + 1}, v{t + 1}')


def store_x(a, acc, pk, s_tb, s_c, xo, sq):
    for i in range(8):
        a(f'v_cvt_pk_bf16_f32 v{pk + i}, v{acc + 2 * i}, v{acc + 2 * i + 1}')
    a(f's_mul_i32 s42, s{s_tb}, 14')
    a(f's_add_u32 s42, s42, s{s_c}')
    a('s_lshl_b32 s43, s42, 11')
    a(f's_add_u32 s43, s43, {XF[xo]}')
    a(f'buffer_store_dwordx4 {vr(pk)}, v1, s[4:7], s43 offen')
    a(f'buffer_store_dwordx4 {vr(pk + 4)}, v1, s[4:7], s43 offen offset:1024')
    for t in out_stats(acc, sq, sq + 1):
        a(t)
    a('s_lshl_b32 s43, s42, 9')
    a(f's_add_u32 s43, s43, {ST[xo]}')
    a('v_lshlrev_b32 v4, 3, v0')
    a(f'buffer_store_dwordx2 {vr(sq, 2)}, v4, s[4:7], s43 offen')


def gen_wo(a, L):
    name = f'wo{L}_kernel'
    k = K(a, name, 200)
    k.grid = 224; k.lds = 32 * KB
    done = f'{name}_done'
    xin = 0 if L == 0 else 2
    xo = 1 if L == 0 else 3
    prologue(a, 224, done)
    O = 8; ACC = 136; W = 152; R = 168; PK = 176; SQ = 184; T = 186
    a('s_lshl_b32 s23, s21, 15')
    a('s_lshl_b32 s25, s3, 13')
    a('s_add_u32 s26, s25, s23')
    dma(a, 8, 26, 25, WO_F, 0)
    a('s_lshl_b32 s24, s22, 15')
    load_frags(a, 32, O, 24, OF[L])
    a('s_mul_i32 s27, s22, 14')
    a('s_add_u32 s27, s27, s21')
    a('s_lshl_b32 s27, s27, 11')
    load_frags(a, 2, R, 27, XF[xin])
    a('s_waitcnt vmcnt(34)')
    a('s_barrier')
    NB = 4
    for u in range(NB - 1):
        a(f'ds_read_b128 {vr(W + 4 * u)}, v1 offset:{u * KB}')
    for ks in range(32):
        n = ks + NB - 1
        if n < 32:
            a(f'ds_read_b128 {vr(W + 4 * (n % NB))}, v1 offset:{n * KB}')
        a(f's_waitcnt vmcnt({33 - ks}) lgkmcnt({min(NB - 1, 31 - ks)})')
        c = '0' if ks == 0 else vr(ACC, 16)
        a(f'v_mfma_f32_32x32x16_bf16 {vr(ACC, 16)}, {vr(W + 4 * (ks % NB))}, {vr(O + 4 * ks)}, {c}')
    a('s_waitcnt vmcnt(0)')
    unpack_add(a, ACC, R, T)
    store_x(a, ACC, PK, 22, 21, xo, SQ)
    a(f'{done}:')
    a('s_endpgm')
    return k


def gelu_list(acc, cs, b1, negmean, rstd, tmp, pk, sC0, sC1):
    L = []
    for g in range(4):
        idx = [4 * g + e for e in range(4)]
        u = [tmp + e for e in range(4)]
        for e, i in enumerate(idx):
            L.append(f'v_fma_f32 v{acc + i}, v{negmean}, v{cs + i}, v{acc + i}')
        for e, i in enumerate(idx):
            L.append(f'v_fma_f32 v{acc + i}, v{acc + i}, v{rstd}, v{b1 + i}')
        for e, i in enumerate(idx):
            L.append(f'v_mul_f32 v{u[e]}, v{acc + i}, v{acc + i}')
        for e, i in enumerate(idx):
            L.append(f'v_fma_f32 v{u[e]}, v{u[e]}, s{sC1}, v{sC0}')
        for e, i in enumerate(idx):
            L.append(f'v_mul_f32 v{u[e]}, v{u[e]}, v{acc + i}')
        for e, i in enumerate(idx):
            L.append(f'v_exp_f32 v{u[e]}, v{u[e]}')
        for e, i in enumerate(idx):
            L.append(f'v_add_f32 v{u[e]}, 1.0, v{u[e]}')
        for e, i in enumerate(idx):
            L.append(f'v_rcp_f32 v{u[e]}, v{u[e]}')
        for e, i in enumerate(idx):
            L.append(f'v_mul_f32 v{acc + i}, v{acc + i}, v{u[e]}')
        for e in (0, 2):
            i = idx[e]
            L.append(f'v_cvt_pk_bf16_f32 v{pk + i // 2}, v{acc + i}, v{acc + i + 1}')
    return L


def gen_w1(a, L):
    name = f'w1{L}_kernel'
    k = K(a, name, 256)
    k.grid = 224; k.lds = 112 * KB
    done = f'{name}_done'
    xin = 1 if L == 0 else 3
    prologue(a, 224, done)
    X = 8
    ACC = [120, 136]
    W = 152
    SB = 168
    CS = 196; B1 = 212
    NM, RS, VAR, T0, T1, VC0 = 228, 229, 230, 231, 232, 233
    TMP = 236
    PK = 240
    a(f's_mul_i32 s23, s21, {112 * KB}')
    a(f's_mul_i32 s24, s22, {28 * KB}')
    a(f's_mul_i32 s25, s3, {7 * KB}')
    a('s_add_u32 s26, s25, s23')
    dma(a, 7, 26, 25, W1_F, 0)
    load_frags(a, 28, X, 24, XF[xin])
    a(f's_mul_i32 s27, s22, {14 * 512}')
    a('v_lshlrev_b32 v4, 3, v0')
    for i in range(14):
        if i % 8 == 0:
            a(f's_add_u32 s41, s27, {ST[xin] + i * 512}')
        a(f'buffer_load_dwordx2 {vr(SB + 2 * i, 2)}, v4, s[4:7], s41 offen offset:{(i % 8) * 512}')
    dma(a, 7, 26, 25, W1_F + 28 * KB, 28 * KB)
    a('v_add_u32 v7, 0x10000, v1')
    a('v_lshlrev_b32 v5, 4, v3')
    a('s_lshl_b32 s28, s21, 9')
    a(f's_mov_b32 s30, {f32(-2 * math.sqrt(2 / math.pi) * LOG2E * 0.044715)}')
    a(f'v_mov_b32 v{VC0}, {f32(-2 * math.sqrt(2 / math.pi) * LOG2E)}')
    a('s_mul_i32 s31, s22, 112')
    a('s_lshl_b32 s32, s21, 3')
    a('s_add_u32 s31, s31, s32')
    a('s_lshl_b32 s31, s31, 10')
    a(f's_add_u32 s31, s31, {HF[L]}')
    NB = 4

    def rd(t, ks):
        off = (t * 28 + ks) * KB
        slot = (t * 28 + ks) % NB
        if off < 65536:
            return f'ds_read_b128 {vr(W + 4 * slot)}, v1 offset:{off}'
        return f'ds_read_b128 {vr(W + 4 * slot)}, v7 offset:{off - 65536}'

    def vec_loads(t):
        Ls = []
        Ls.append(f's_add_u32 s41, s28, {CS_W1 + 128 * t}')
        for g in range(4):
            Ls.append(f'buffer_load_dwordx4 {vr(CS + 4 * g)}, v5, s[4:7], s41 offen offset:{32 * g}')
        Ls.append(f's_add_u32 s41, s28, {B1F + 128 * t}')
        for g in range(4):
            Ls.append(f'buffer_load_dwordx4 {vr(B1 + 4 * g)}, v5, s[4:7], s41 offen offset:{32 * g}')
        return Ls

    a('s_waitcnt vmcnt(49)')
    a('s_barrier')
    for u in range(NB - 1):
        a(rd(0, u))
    for ks in range(28):
        n = ks + NB - 1
        if n < 28:
            a(rd(0, n))
        a(f's_waitcnt vmcnt({48 - ks}) lgkmcnt({min(NB - 1, 27 - ks)})')
        c = '0' if ks == 0 else vr(ACC[0], 16)
        a(f'v_mfma_f32_32x32x16_bf16 {vr(ACC[0], 16)}, {vr(W + 4 * (ks % NB))}, {vr(X + 4 * ks)}, {c}')
    dma(a, 7, 26, 25, W1_F + 56 * KB, 56 * KB)
    dma(a, 7, 26, 25, W1_F + 84 * KB, 84 * KB)
    for s in vec_loads(0):
        a(s)
    a('s_waitcnt vmcnt(22)')
    a('s_barrier')
    stats_reduce(a, SB, NM, VAR, T0, T1)
    a(f'v_add_f32 v{T0}, {f32(EPS)}, v{VAR}')
    a(f'v_rsq_f32 v{RS}, v{T0}')
    a(f'v_sub_f32 v{NM}, 0, v{NM}')
    a(f'v_mul_f32 v{T0}, v{RS}, v{RS}')
    a(f'v_mul_f32 v{T0}, v{T0}, v{VAR}')
    a(f'v_add_f32 v{T0}, {f32(EPS)}, v{T0}')
    a(f'v_rsq_f32 v{T0}, v{T0}')
    a(f'v_mul_f32 v{RS}, v{RS}, v{T0}')
    for t in range(1, 5):
        main = []
        if t < 4:
            for u in range(NB - 1):
                main.append(rd(t, u))
            for ks in range(28):
                n = ks + NB - 1
                if n < 28:
                    main.append(rd(t, n))
                main.append(f's_waitcnt lgkmcnt({min(NB - 1, 27 - ks)})')
                acc = ACC[t & 1]
                c = '0' if ks == 0 else vr(acc, 16)
                main.append(f'v_mfma_f32_32x32x16_bf16 {vr(acc, 16)}, {vr(W + 4 * ((t * 28 + ks) % NB))}, {vr(X + 4 * ks)}, {c}')
        side = ['s_waitcnt vmcnt(0)'] + gelu_list(ACC[(t - 1) & 1], CS, B1, NM, RS, TMP, PK, VC0, 30)
        side.append(f'buffer_store_dwordx4 {vr(PK)}, v1, s[4:7], s31 offen offset:{(2 * (t - 1)) * KB % 4096}' if t - 1 < 2 else
                    f'buffer_store_dwordx4 {vr(PK)}, v1, s[4:7], s33 offen offset:{(2 * (t - 1)) * KB % 4096}')
        side.append(f'buffer_store_dwordx4 {vr(PK + 4)}, v1, s[4:7], s31 offen offset:{(2 * (t - 1) + 1) * KB % 4096}' if t - 1 < 2 else
                    f'buffer_store_dwordx4 {vr(PK + 4)}, v1, s[4:7], s33 offen offset:{(2 * (t - 1) + 1) * KB % 4096}')
        if t < 4:
            side += vec_loads(t)
        if t == 1:
            a('s_add_u32 s33, s31, 4096')
        for s in interleave(main, side, 6):
            a(s)
        if t == 1:
            a('s_barrier')
    a(f'{done}:')
    a('s_endpgm')
    return k


def gen_w2(a, L):
    name = f'w2{L}_kernel'
    k = K(a, name, 256, na=128)
    k.grid = 224; k.lds = 64 * KB
    done = f'{name}_done'
    xin = 1 if L == 0 else 3
    prologue(a, 224, done)
    a('s_and_b32 s23, s21, 1')
    a('s_lshr_b32 s24, s21, 1')
    a('s_lshl_b32 s25, s20, 2')
    a('s_lshl_b32 s23, s23, 1')
    a('s_add_u32 s25, s25, s23')
    a('s_lshl_b32 s26, s24, 1')
    a(f's_mul_i32 s27, s3, {28 * KB}')
    a(f's_mul_i32 s28, s25, {112 * KB}')
    a('s_add_u32 s28, s28, s27')
    a(f's_add_u32 s29, s28, {112 * KB}')
    a(f's_mul_i32 s30, s26, {112 * KB}')
    a('s_add_u32 s30, s30, s27')
    a(f's_add_u32 s31, s30, {112 * KB}')
    D = 14
    RB = 8
    ACC = [0, 16, 32, 48]

    def issue(ks):
        b = RB + 16 * (ks % D)
        for (sreg, base, o) in ((28, HF[L], 0), (29, HF[L], 4), (30, W2_F, 8), (31, W2_F, 12)):
            a(f's_add_u32 s41, s{sreg}, {base + ks * KB}')
            a(f'buffer_load_dwordx4 {vr(b + o)}, v1, s[4:7], s41 offen')
    for ks in range(D):
        issue(ks)
    for ks in range(28):
        rem = min(27, ks + D - 1) - ks
        a(f's_waitcnt vmcnt({4 * rem})')
        b = RB + 16 * (ks % D)
        for ti in range(2):
            for ci in range(2):
                acc = ACC[2 * ti + ci]
                c = '0' if ks == 0 else ar(acc, 16)
                a(f'v_mfma_f32_32x32x16_bf16 {ar(acc, 16)}, {vr(b + 8 + 4 * ci)}, {vr(b + 4 * ti)}, {c}')
        if ks + D < 28:
            issue(ks + D)
    a('s_lshr_b32 s32, s3, 1')
    a('s_add_u32 s32, s32, s25')
    a('s_and_b32 s33, s3, 1')
    a('s_add_u32 s33, s33, s26')
    R = 232; BB = 240;
    a('s_mul_i32 s34, s32, 14')
    a('s_add_u32 s34, s34, s33')
    a('s_lshl_b32 s34, s34, 11')
    load_frags(a, 2, R, 34, XF[xin])
    a('v_lshlrev_b32 v5, 4, v3')
    a('s_lshl_b32 s35, s33, 7')
    a(f's_add_u32 s35, s35, {B2F}')
    for g in range(4):
        a(f'buffer_load_dwordx4 {vr(BB + 4 * g)}, v5, s[4:7], s35 offen offset:{32 * g}')
    a('s_lshl_b32 s36, s3, 12')
    a('v_add_u32 v6, s36, v1')
    for t in range(4):
        for g in range(4):
            a(f'ds_write_b128 v6, {ar(ACC[t] + 4 * g)} offset:{t * 16 * KB + g * KB}')
    a('s_waitcnt lgkmcnt(0)')
    a('s_barrier')
    a('s_lshl_b32 s36, s3, 14')
    a('v_add_u32 v6, s36, v1')
    P = 8
    for w in range(4):
        for g in range(4):
            a(f'ds_read_b128 {vr(P + 16 * w + 4 * g)}, v6 offset:{w * 4 * KB + g * KB}')
    a('s_waitcnt vmcnt(0) lgkmcnt(0)')
    for i in range(16):
        a(f'v_add_f32 v{P + i}, v{P + i}, v{P + 16 + i}')
        a(f'v_add_f32 v{P + 32 + i}, v{P + 32 + i}, v{P + 48 + i}')
    for i in range(16):
        a(f'v_add_f32 v{P + i}, v{P + i}, v{BB + i}')
        a(f'v_add_f32 v{P + i}, v{P + i}, v{P + 32 + i}')
    unpack_add(a, P, R, 80)
    PK = 84
    if L == 0:
        store_x(a, P, PK, 32, 33, 2, 92)
    else:
        for i in range(8):
            a(f'v_cvt_pk_bf16_f32 v{PK + i}, v{P + 2 * i}, v{P + 2 * i + 1}')
        srd(a, 8, 18, 19, 2048 * 448 * 2)
        a(f'v_permlane32_swap_b32 v{PK}, v{PK + 2}')
        a(f'v_permlane32_swap_b32 v{PK + 1}, v{PK + 3}')
        a(f'v_permlane32_swap_b32 v{PK + 4}, v{PK + 6}')
        a(f'v_permlane32_swap_b32 v{PK + 5}, v{PK + 7}')
        a('v_mul_u32_u24 v6, 896, v2')
        a('v_lshl_add_u32 v6, v3, 4, v6')
        a(f's_mul_i32 s36, s32, {32 * 896}')
        a('s_lshl_b32 s37, s33, 6')
        a('s_add_u32 s36, s36, s37')
        a(f'buffer_store_dwordx4 {vr(PK)}, v6, s[8:11], s36 offen')
        a(f'buffer_store_dwordx4 {vr(PK + 4)}, v6, s[8:11], s36 offen offset:32')
    a(f'{done}:')
    a('s_endpgm')
    return k


def main():
    a = Asm()
    ks = [gen_prep(a)]
    for L in range(2):
        ks += [gen_qkv(a, L), gen_att(a, L), gen_wo(a, L), gen_w1(a, L), gen_w2(a, L)]
    body = a.finish()
    hdr = open(f'cdna_kernels/{NAME}.s.ref').read().split('; Override')[0]
    out = hdr
    for k in ks:
        out += f'; @launch kernel={k.name} grid=({k.grid},1,1) block=(256,1,1) lds={k.lds}\n'
    out += '.amdgcn_target "amdgcn-amd-amdhsa--gfx950"\n.text\n' + body
    out += '.section .rodata,"a"\n'
    for k in ks:
        out += '.p2align 6\n' + k.desc()
    path = sys.argv[1] if len(sys.argv) > 1 else f'cdna_kernels/{NAME}.s'
    open(path, 'w').write(out)
    print('wrote', path, len(out))


if __name__ == '__main__':
    main()
```

```python
import math, os, struct, sys
from asmlib import Asm

NAME = 'interleave_layers__sliding_block__mixer_channel_mlp__prompt'
KB = 1024
WQKV_F = 0x000000
WO_F = 0x150000
W1_F = 0x1C0000
W2_F = 0x348000
EXQ = 0x4D0000
EX1 = 0x4E0000
B2F = 0x4F0000
FLAGS = 0x4F8000
XF = [0x600000 + i * 0x200000 for i in range(4)]
ST = [0xE00000 + i * 0x80000 for i in range(4)]
KVF = [0x1000000, 0x1400000]
OF = [0x1800000, 0x1A00000]
HF = [0x2000000, 0x2800000]
WS_BYTES = 0x10000000
EPS = 1e-5
LOG2E = 1.4426950408889634
STAMPS = bool(os.environ.get('STAMP'))
STAMP_BASE = 0x4000000
FORCE_SLOW = bool(os.environ.get('FORCE_SLOW'))
L_A = 0
L_KV = 84 * KB
L_WO = 128 * KB
LDS_BYTES = 160 * KB
T_O, T_X1, T_H, T_X2 = 0, 1, 2, 3


def f32(x):
    return '0x%08x' % struct.unpack('<I', struct.pack('<f', x))[0]


def vr(b, n=4):
    return f'v[{b}:{b+n-1}]'


def ar(b, n=4):
    return f'a[{b}:{b+n-1}]'


class G(Asm):
    def __init__(self):
        super().__init__()
        self.vm = []; self.ds = []; self.nst = 0

    def _cnt(self, lst, tag, mx):
        idx = [i for i, t in enumerate(lst) if t == tag]
        if not idx:
            return None
        i = idx[-1]
        n = len(lst) - 1 - i
        del lst[:i + 1]
        return min(n, mx)

    def op(self, o):
        if isinstance(o, str):
            self(o)
        elif o[0] == 'vm':
            self(o[1]); self.vm.append(o[2])
        elif o[0] == 'ds':
            self(o[1]); self.ds.append(o[2])
        elif o[0] == 'wvm':
            n = self._cnt(self.vm, o[1], 63)
            if n is not None:
                self(f's_waitcnt vmcnt({n})')
        elif o[0] == 'wds':
            n = self._cnt(self.ds, o[1], 15)
            if n is not None:
                self(f's_waitcnt lgkmcnt({n})')
        elif o[0] == 'w2':
            n = self._cnt(self.vm, o[1], 63); m = self._cnt(self.ds, o[2], 15)
            s = ' '.join(x for x in (f'vmcnt({n})' if n is not None else '', f'lgkmcnt({m})' if m is not None else '') if x)
            if s:
                self('s_waitcnt ' + s)
        else:
            raise ValueError(o)

    def ops(self, L):
        for o in L:
            self.op(o)

    def drain(self, vm=True, ds=True):
        s = []
        if vm:
            s.append('vmcnt(0)'); self.vm = []
        if ds:
            s.append('lgkmcnt(0)'); self.ds = []
        self('s_waitcnt ' + ' '.join(s))

    def stamp(self):
        if not STAMPS:
            return
        self('s_memtime s[60:61]')
        self('s_waitcnt lgkmcnt(0)'); self.ds = []
        self('v_mov_b32 v255, s60')
        self.op(('vm', 'buffer_store_dword v255, v6, s[4:7], s56 offen', 'stamp'))
        self('s_add_u32 s56, s56, 4')


def srd(a, d, lo, hi, nbytes):
    a(f's_mov_b32 s{d}, s{lo}')
    a(f's_and_b32 s{d+1}, s{hi}, 0xffff')
    a(f's_mov_b32 s{d+2}, {nbytes:#x}')
    a(f's_mov_b32 s{d+3}, 0x00020000')


class K:
    def __init__(self, a, name, nv, na=0, ns=96):
        self.a = a; self.name = name; self.nv = nv; self.na = na; self.ns = ns
        a.raw(f'.p2align 8\n.globl {name}\n.type {name},@function')
        a(f'{name}:')

    def desc(self):
        acc = (self.nv + 3) // 4 * 4
        return (f'.amdhsa_kernel {self.name}\n'
                f'  .amdhsa_next_free_vgpr {acc + self.na}\n'
                f'  .amdhsa_next_free_sgpr {self.ns}\n'
                f'  .amdhsa_accum_offset {acc}\n'
                f'  .amdhsa_group_segment_fixed_size 0\n'
                f'  .amdhsa_kernarg_size 88\n'
                f'  .amdhsa_user_sgpr_count 2\n'
                f'  .amdhsa_user_sgpr_kernarg_segment_ptr 1\n'
                f'  .amdhsa_system_sgpr_workgroup_id_x 1\n'
                f'.end_amdhsa_kernel\n')


def is_mfma(o):
    return isinstance(o, str) and o.startswith('v_mfma')


def weave(main, sides):
    out = []; pos = [0] * len(sides); n = 0; acc = [0.0] * len(sides)
    for m in main:
        out.append(m)
        if is_mfma(m):
            for si, (L, per, start) in enumerate(sides):
                if n >= start:
                    acc[si] += per
                    while acc[si] >= 1 and pos[si] < len(L):
                        e = L[pos[si]]; pos[si] += 1; acc[si] -= 1
                        out += e if isinstance(e, list) else [e]
            n += 1
    for si, (L, per, start) in enumerate(sides):
        for e in L[pos[si]:]:
            out += e if isinstance(e, list) else [e]
    return out


def weave_n(main, side, every):
    out = []; p = 0
    for i, m in enumerate(main):
        out.append(m)
        if (i + 1) % every == 0 and p < len(side):
            e = side[p]; p += 1
            out += e if isinstance(e, list) else [e]
    for e in side[p:]:
        out += e if isinstance(e, list) else [e]
    return out


MF = 'v_mfma_f32_32x32x16_bf16'


def gen_prep(a):
    k = K(a, 'prep_kernel', 96)
    NCS, NQ, NO, N1, N2, NX = 104, 84, 28, 98, 98, 112
    b_q = NCS; b_o = b_q + NQ; b_1 = b_o + NO; b_2 = b_1 + N1; b_x = b_2 + N2; b_end = b_x + NX
    k.grid = b_end
    a(f's_cmp_ge_u32 s2, {b_end}')
    a('s_cbranch_scc1 prep_done')
    a('s_load_dwordx8 s[16:23], s[0:1], 0')
    a('s_load_dwordx8 s[24:31], s[0:1], 32')
    a('s_load_dwordx2 s[32:33], s[0:1], 80')
    a('v_lshrrev_b32 v1, 6, v0')
    a('v_and_b32 v0, 63, v0')
    a('v_readfirstlane_b32 s3, v1')
    a('v_and_b32 v2, 31, v0')
    a('v_lshrrev_b32 v3, 5, v0')
    a('v_lshlrev_b32 v4, 4, v0')
    a('s_waitcnt lgkmcnt(0)')
    srd(a, 4, 32, 33, WS_BYTES)
    a(f's_cmp_lt_u32 s2, {b_q}')
    a('s_cbranch_scc1 prep_cs')
    a(f's_cmp_lt_u32 s2, {b_o}')
    a('s_cbranch_scc1 prep_q')
    a(f's_cmp_lt_u32 s2, {b_1}')
    a('s_cbranch_scc1 prep_o')
    a(f's_cmp_lt_u32 s2, {b_2}')
    a('s_cbranch_scc1 prep_1')
    a(f's_cmp_lt_u32 s2, {b_x}')
    a('s_cbranch_scc1 prep_2')
    a('s_branch prep_x')

    def gather(pitch, rowoff):
        for u in range(4):
            for j in range(8):
                T = rowoff(u, j) * pitch
                dst = 48 + 8 * u + j
                if T < 4096:
                    a(f'buffer_load_ushort v{dst}, v5, s[8:11], 0 offen offset:{T}')
                else:
                    a(f's_mov_b32 s40, {T}')
                    a(f'buffer_load_ushort v{dst}, v5, s[8:11], s40 offen')

    def pack():
        a('s_waitcnt vmcnt(0)')
        for d in range(16):
            a(f'v_lshl_or_b32 v{16 + d}, v{49 + 2 * d}, 16, v{48 + 2 * d}')

    pj = lambda j: j if j < 4 else j + 4

    def div(dst, src, d):
        M = (65536 + d - 1) // d
        a(f's_mul_i32 s{dst}, s{src}, {M}')
        a(f's_lshr_b32 s{dst}, s{dst}, 16')

    a('prep_q:')
    srd(a, 8, 18, 19, 448 * 1344 * 2)
    a(f's_sub_u32 s34, s2, {b_q}')
    a('s_lshl_b32 s34, s34, 2')
    a('s_add_u32 s34, s34, s3')
    div(35, 34, 7)
    a('s_mul_i32 s36, s35, 7')
    a('s_sub_u32 s36, s34, s36')
    div(37, 35, 3)
    a('s_mul_i32 s38, s37, 3')
    a('s_sub_u32 s38, s35, s38')
    a('s_mul_i32 s39, s38, 896')
    a('s_mul_i32 s41, s37, 56')
    a('s_add_u32 s39, s39, s41')
    a(f's_mul_i32 s41, s36, {64 * 2688}')
    a('s_add_u32 s39, s39, s41')
    a(f'v_mul_u32_u24 v5, {4 * 2688}, v3')
    a('v_lshl_add_u32 v5, v2, 1, v5')
    a('v_add_u32 v5, s39, v5')
    a('v_cmp_gt_u32 vcc, 28, v2')
    a('v_mov_b32 v6, 0x7ffffff0')
    a('v_cndmask_b32 v5, v6, v5, vcc')
    gather(2688, lambda u, j: 16 * u + pj(j))
    a('s_mul_i32 s39, s37, 28')
    a('s_lshl_b32 s41, s36, 2')
    a('s_add_u32 s39, s39, s41')
    a('s_mul_i32 s39, s39, 3')
    a('s_add_u32 s39, s39, s38')
    a('s_lshl_b32 s39, s39, 10')
    a(f's_add_u32 s39, s39, {WQKV_F}')
    pack()
    for u in range(4):
        a(f's_add_u32 s40, s39, {u * 3 * KB}')
        a(f'buffer_store_dwordx4 {vr(16 + 4 * u)}, v4, s[4:7], s40 offen')
    a('s_endpgm')

    a('prep_o:')
    srd(a, 8, 20, 21, 448 * 448 * 2)
    a(f's_sub_u32 s34, s2, {b_o}')
    a('s_lshl_b32 s34, s34, 2')
    a('s_add_u32 s34, s34, s3')
    a('s_and_b32 s36, s34, 7')
    a('s_lshr_b32 s37, s34, 3')
    a(f's_mul_i32 s39, s36, {56 * 896}')
    a('s_lshl_b32 s41, s37, 6')
    a('s_add_u32 s39, s39, s41')
    a(f'v_mul_u32_u24 v5, {4 * 896}, v3')
    a('v_lshl_add_u32 v5, v2, 1, v5')
    a('v_add_u32 v5, s39, v5')
    gather(896, lambda u, j: 28 * (u >> 1) + 16 * (u & 1) + pj(j))
    a('s_lshl_b32 s39, s37, 5')
    a('s_lshl_b32 s41, s36, 2')
    a('s_add_u32 s39, s39, s41')
    a('s_lshl_b32 s39, s39, 10')
    a(f's_add_u32 s39, s39, {WO_F}')
    a('v_cmp_eq_u32 vcc, 0, v3')
    pack()
    for u in (1, 3):
        for d in (2, 3):
            r = 16 + 4 * u + d
            a(f'v_cndmask_b32 v{r}, 0, v{r}, vcc')
    for u in range(4):
        a(f'buffer_store_dwordx4 {vr(16 + 4 * u)}, v4, s[4:7], s39 offen offset:{u * KB}')
    a('s_endpgm')

    a('prep_1:')
    srd(a, 8, 24, 25, 448 * 1792 * 2)
    a(f's_sub_u32 s34, s2, {b_1}')
    a('s_lshl_b32 s34, s34, 2')
    a('s_add_u32 s34, s34, s3')
    div(37, 34, 7)
    a('s_mul_i32 s36, s37, 7')
    a('s_sub_u32 s36, s34, s36')
    a(f's_mul_i32 s39, s36, {64 * 3584}')
    a('s_lshl_b32 s41, s37, 6')
    a('s_add_u32 s39, s39, s41')
    a(f'v_mul_u32_u24 v5, {4 * 3584}, v3')
    a('v_lshl_add_u32 v5, v2, 1, v5')
    a('v_add_u32 v5, s39, v5')
    gather(3584, lambda u, j: 16 * u + pj(j))
    a('s_lshl_b32 s39, s34, 12')
    a(f's_add_u32 s39, s39, {W1_F}')
    pack()
    for u in range(4):
        a(f'buffer_store_dwordx4 {vr(16 + 4 * u)}, v4, s[4:7], s39 offen offset:{u * KB}')
    a('s_endpgm')

    a('prep_2:')
    srd(a, 8, 28, 29, 1792 * 448 * 2)
    a(f's_sub_u32 s34, s2, {b_2}')
    a('s_lshl_b32 s34, s34, 2')
    a('s_add_u32 s34, s34, s3')
    div(37, 34, 28)
    a('s_mul_i32 s36, s37, 28')
    a('s_sub_u32 s36, s34, s36')
    a(f's_mul_i32 s39, s36, {64 * 896}')
    a('s_lshl_b32 s41, s37, 6')
    a('s_add_u32 s39, s39, s41')
    a(f'v_mul_u32_u24 v5, {4 * 896}, v3')
    a('v_lshl_add_u32 v5, v2, 1, v5')
    a('v_add_u32 v5, s39, v5')
    gather(896, lambda u, j: 16 * u + pj(j))
    a('s_lshl_b32 s39, s34, 12')
    a(f's_add_u32 s39, s39, {W2_F}')
    pack()
    for u in range(4):
        a(f'buffer_store_dwordx4 {vr(16 + 4 * u)}, v4, s[4:7], s39 offen offset:{u * KB}')
    a('s_endpgm')

    a('prep_x:')
    srd(a, 8, 16, 17, 2048 * 448 * 2)
    a(f's_sub_u32 s34, s2, {b_x}')
    a('s_lshl_b32 s34, s34, 2')
    a('s_add_u32 s34, s34, s3')
    div(37, 34, 7)
    a('s_mul_i32 s36, s37, 7')
    a('s_sub_u32 s36, s34, s36')
    a(f's_mul_i32 s39, s37, {32 * 896}')
    a('s_lshl_b32 s41, s36, 7')
    a('s_add_u32 s39, s39, s41')
    a('v_mul_u32_u24 v5, 896, v2')
    a('v_lshl_add_u32 v5, v3, 3, v5')
    for cc in range(2):
        for g in range(4):
            r = 16 + 8 * cc + 2 * g
            a(f'buffer_load_dwordx2 {vr(r, 2)}, v5, s[8:11], s39 offen offset:{64 * cc + 16 * g}')
    a('s_lshl_b32 s39, s34, 12')
    a(f's_add_u32 s39, s39, {XF[0]}')
    a('s_lshl_b32 s41, s34, 10')
    a(f's_add_u32 s41, s41, {ST[0]}')
    a('s_waitcnt vmcnt(0)')
    for u in range(4):
        a(f'buffer_store_dwordx4 {vr(16 + 4 * u)}, v4, s[4:7], s39 offen offset:{u * KB}')
    for cc in range(2):
        s, q = 40 + 2 * cc, 41 + 2 * cc
        a(f'v_mov_b32 v{s}, 0')
        a(f'v_mov_b32 v{q}, 0')
        for d in range(8):
            r = 16 + 8 * cc + d
            a(f'v_lshlrev_b32 v32, 16, v{r}')
            a(f'v_and_b32 v33, 0xffff0000, v{r}')
            a(f'v_add_f32 v{s}, v{s}, v32')
            a(f'v_fmac_f32 v{q}, v32, v32')
            a(f'v_add_f32 v{s}, v{s}, v33')
            a(f'v_fmac_f32 v{q}, v33, v33')
    a('buffer_store_dwordx4 v[40:43], v4, s[4:7], s41 offen')
    a('s_endpgm')

    a('prep_cs:')
    div(37, 2, 3)
    a('s_mul_i32 s38, s37, 3')
    a('s_sub_u32 s38, s2, s38')
    a('s_mul_i32 s39, s38, 896')
    a('s_mul_i32 s41, s37, 56')
    a('s_add_u32 s39, s39, s41')
    a('s_sub_u32 s42, s2, 48')
    a('s_lshl_b32 s43, s42, 6')
    a('s_lshl_b32 s44, s2, 10')
    a(f's_add_u32 s44, s44, {EXQ}')
    a('s_lshl_b32 s45, s42, 10')
    a(f's_add_u32 s45, s45, {EX1}')
    a(f's_mov_b32 s34, {448 * 1344 * 2}')
    a(f's_mov_b32 s35, {448 * 1792 * 2}')
    a('s_movk_i32 s46, 2688')
    a('s_movk_i32 s47, 3584')
    a('s_cmp_lt_u32 s2, 48')
    a('s_cselect_b32 s8, s18, s24')
    a('s_cselect_b32 s9, s19, s25')
    a('s_cselect_b32 s10, s34, s35')
    a('s_cselect_b32 s36, s46, s47')
    a('s_cselect_b32 s40, s39, s43')
    a('s_cselect_b32 s44, s44, s45')
    a('s_cselect_b32 s48, 28, 32')
    a('s_mov_b32 s11, 0x00020000')
    a('s_and_b32 s9, s9, 0xffff')
    a('v_and_b32 v7, 3, v0')
    a('v_lshrrev_b32 v8, 2, v0')
    a('s_mul_i32 s39, s3, 112')
    a('v_add_u32 v9, s39, v8')
    a('v_mul_lo_u32 v5, v9, s36')
    a('v_lshl_add_u32 v5, v7, 4, v5')
    a('s_lshl_b32 s41, s36, 4')
    for i in range(7):
        a(f'buffer_load_dwordx4 {vr(16 + 4 * i)}, v5, s[8:11], s40 offen')
        if i < 6:
            a('s_add_u32 s40, s40, s41')
    srd(a, 12, 26, 27, 1792 * 2)
    a('v_lshlrev_b32 v13, 1, v2')
    a('s_max_i32 s43, s43, 0')
    a('buffer_load_ushort v14, v13, s[12:15], s43 offen')
    for e in range(8):
        a(f'v_mov_b32 v{80 + e}, 0')
    for i in range(7):
        a(f's_waitcnt vmcnt({7 - i})')
        for d in range(4):
            r = 16 + 4 * i + d
            a(f'v_lshlrev_b32 v10, 16, v{r}')
            a(f'v_and_b32 v11, 0xffff0000, v{r}')
            a(f'v_add_f32 v{80 + 2 * d}, v{80 + 2 * d}, v10')
            a(f'v_add_f32 v{81 + 2 * d}, v{81 + 2 * d}, v11')
    a('s_lshl_b32 s39, s3, 4')
    a('v_add_u32 v9, s39, v8')
    a('v_lshlrev_b32 v9, 7, v9')
    a('v_lshl_add_u32 v9, v7, 5, v9')
    a('ds_write_b128 v9, v[80:83]')
    a('ds_write_b128 v9, v[84:87] offset:16')
    a('s_waitcnt vmcnt(0) lgkmcnt(0)')
    a('s_barrier')
    a('s_cmp_eq_u32 s3, 0')
    a('s_cbranch_scc0 prep_cs_b')
    a('v_lshlrev_b32 v12, 2, v2')
    a('v_lshl_add_u32 v12, v3, 12, v12')
    for r in range(32):
        a(f'ds_read_b32 v{16 + r}, v12 offset:{128 * r}')
    a('s_waitcnt lgkmcnt(0)')
    for r in range(1, 32):
        a(f'v_add_f32 v16, v16, v{16 + r}')
    a('v_mov_b32 v17, v16')
    a('v_permlane32_swap_b32 v16, v17')
    a('v_add_f32 v16, v16, v17')
    a('v_cvt_pk_bf16_f32 v20, v16, v16')
    a('v_lshlrev_b32 v18, 16, v20')
    a('v_sub_f32 v18, v16, v18')
    a('v_cvt_pk_bf16_f32 v21, v18, v18')
    a('v_and_b32 v21, 0xffff, v21')
    a('s_cmp_lt_u32 s2, 48')
    a('s_cselect_b32 s39, 0, 0xffff')
    a('v_and_b32 v14, s39, v14')
    a('s_cmp_eq_u32 s38, 2')
    a('s_cselect_b32 s41, 28, 99')
    a('s_cmp_lt_u32 s2, 48')
    a('s_cselect_b32 s41, s41, 99')
    a('v_cmp_gt_u32 vcc, s48, v2')
    a('v_cndmask_b32 v20, 0, v20, vcc')
    a('v_cndmask_b32 v21, 0, v21, vcc')
    a('v_mov_b32 v15, 0x3f80')
    a('v_cmp_eq_u32 vcc, s41, v2')
    a('v_cndmask_b32 v14, v14, v15, vcc')
    a('v_lshl_or_b32 v21, v14, 16, v21')
    a('v_mov_b32 v22, v14')
    a('v_mov_b32 v23, 0')
    a('v_cmp_eq_u32 vcc, 0, v3')
    for r in (20, 21, 22):
        a(f'v_cndmask_b32 v{r}, 0, v{r}, vcc')
    a('buffer_store_dwordx4 v[20:23], v4, s[4:7], s44 offen')
    a('s_endpgm')
    a('prep_cs_b:')
    a('s_cmp_eq_u32 s3, 1')
    a('s_cbranch_scc0 prep_done')
    a('s_cmp_ge_u32 s2, 7')
    a('s_cbranch_scc1 prep_done')
    srd(a, 12, 30, 31, 448 * 2)
    a('v_lshlrev_b32 v13, 1, v0')
    a('v_lshlrev_b32 v12, 2, v0')
    a('s_lshl_b32 s40, s2, 7')
    a('buffer_load_ushort v16, v13, s[12:15], s40 offen')
    a('s_lshl_b32 s40, s2, 8')
    a(f's_add_u32 s40, s40, {B2F}')
    a('s_waitcnt vmcnt(0)')
    a('v_lshlrev_b32 v16, 16, v16')
    a('buffer_store_dword v16, v12, s[4:7], s40 offen')
    a('prep_done:')
    a('s_endpgm')
    k.lds = 8192
    return k


def dma_ops(n, s_g, s_l, goff, loff, tag):
    L = []
    for i in range(n):
        L.append([f's_add_u32 s40, s{s_g}, {goff + i * KB}',
                  f's_add_u32 m0, s{s_l}, {loff + i * KB}',
                  ('vm', 'buffer_load_dwordx4 v1, s[4:7], s40 offen lds', tag)])
    return L


def ld_ops(n, dst, s_g, goff, tagf, reg=vr, sc='sc1', st='s41'):
    L = []
    for i in range(n):
        L.append([f's_add_u32 {st}, s{s_g}, {goff + i * KB}',
                  ('vm', f'buffer_load_dwordx4 {reg(dst + 4 * i)}, v1, s[4:7], {st} offen {sc}'.rstrip(), tagf(i))])
    return L


def flat(L):
    out = []
    for e in L:
        out += e if isinstance(e, list) else [e]
    return out


def lds_rd(dst, off, tag, reg=vr):
    base, o = (('v1', off) if off < 0x10000 else ('v7', off - 0x10000) if off < 0x20000 else ('v8', off - 0x20000))
    return ('ds', f'ds_read_b128 {reg(dst)}, {base} offset:{o}', tag)


def poll_flags(a, s_line, mask, name):
    lp = a.label('poll'); out = a.label('pollx')
    a(f'{lp}:')
    a('s_add_u32 s50, s50, 1')
    a('s_cmp_gt_u32 s50, 0x400000')
    a(f's_cbranch_scc1 {out}')
    a(f'buffer_load_dword v9, v5, s[4:7], s{s_line} offen sc1')
    a.drain(vm=True, ds=False)
    a('v_cmp_eq_u32 vcc, 1, v9')
    a(f's_and_b32 s51, vcc_lo, {mask:#x}')
    a(f's_cmp_eq_u32 s51, {mask:#x}')
    a(f's_cbranch_scc0 {lp}')
    a(f'{out}:')
    sk = a.label('acq')
    a('s_cmp_eq_u32 s19, 0')
    a(f's_cbranch_scc1 {sk}')
    a('buffer_inv sc1')
    a('s_waitcnt vmcnt(0)')
    a(f'{sk}:')


def publish_flag(a, s_word):
    a.drain(vm=True, ds=False)
    sl = a.label('pubs'); dn = a.label('pubd')
    a('s_mov_b64 exec, 1')
    a('s_cmp_eq_u32 s19, 0')
    a(f's_cbranch_scc0 {sl}')
    a(f'buffer_store_dword v10, v6, s[4:7], s{s_word} offen')
    a(f's_branch {dn}')
    a(f'{sl}:')
    a('buffer_wbl2 sc1')
    a('s_waitcnt vmcnt(0)')
    a(f'buffer_store_dword v10, v6, s[4:7], s{s_word} offen sc1')
    a(f'{dn}:')
    a('s_mov_b64 exec, -1')
    a.vm.append('flag')


def stats_ops(sb, mean, var, t0, t1):
    L = []
    for i in range(1, 14):
        L.append(f'v_add_f32 v{sb}, v{sb}, v{sb + 2 * i}')
        L.append(f'v_add_f32 v{sb + 1}, v{sb + 1}, v{sb + 2 * i + 1}')
    L += [f'v_mov_b32 v{t0}, v{sb}', f'v_mov_b32 v{t1}, v{sb + 1}',
          f'v_permlane32_swap_b32 v{sb}, v{t0}', f'v_permlane32_swap_b32 v{sb + 1}, v{t1}',
          f'v_add_f32 v{sb}, v{sb}, v{t0}', f'v_add_f32 v{sb + 1}, v{sb + 1}, v{t1}',
          f'v_mul_f32 v{mean}, {f32(-1.0 / 448)}, v{sb}',
          f'v_mul_f32 v{var}, {f32(1.0 / 448)}, v{sb + 1}',
          f'v_fma_f32 v{var}, -v{mean}, v{mean}, v{var}',
          f'v_max_f32 v{var}, 0, v{var}']
    return L


def exfrag_ops(ex, nm, irs, t0, t1):
    return [f'v_cvt_pk_bf16_f32 v{ex + 1}, v{nm}, v{irs}',
            f'v_mov_b32 v{ex + 3}, 0',
            f'v_lshlrev_b32 v{t0}, 16, v{ex + 1}',
            f'v_and_b32 v{t1}, 0xffff0000, v{ex + 1}',
            f'v_sub_f32 v{ex}, v{nm}, v{t0}',
            f'v_sub_f32 v{t1}, v{irs}, v{t1}',
            f'v_cvt_pk_bf16_f32 v{ex}, v{t0}, v{ex}',
            f'v_cvt_pk_bf16_f32 v{ex + 2}, v{t1}, v{ex + 3}']


def xtile_out_ops(acc, pk, sq, s_x, s_st):
    L = [f'v_cvt_pk_bf16_f32 v{pk + i}, v{acc + 2 * i}, v{acc + 2 * i + 1}' for i in range(8)]
    L.append(('vm', f'buffer_store_dwordx4 {vr(pk)}, v1, s[4:7], s{s_x} offen', 'st'))
    L.append(('vm', f'buffer_store_dwordx4 {vr(pk + 4)}, v1, s[4:7], s{s_x} offen offset:1024', 'st'))
    s, q, s2, q2 = sq, sq + 1, sq + 2, sq + 3
    L += [f'v_add_f32 v{s}, v{acc}, v{acc + 2}', f'v_add_f32 v{s2}, v{acc + 1}, v{acc + 3}',
          f'v_mul_f32 v{q}, v{acc}, v{acc}', f'v_mul_f32 v{q2}, v{acc + 1}, v{acc + 1}',
          f'v_fmac_f32 v{q}, v{acc + 2}, v{acc + 2}', f'v_fmac_f32 v{q2}, v{acc + 3}, v{acc + 3}']
    for i in range(4, 16, 2):
        L += [f'v_add_f32 v{s}, v{s}, v{acc + i}', f'v_add_f32 v{s2}, v{s2}, v{acc + i + 1}',
              f'v_fmac_f32 v{q}, v{acc + i}, v{acc + i}', f'v_fmac_f32 v{q2}, v{acc + i + 1}, v{acc + i + 1}']
    L += [f'v_add_f32 v{s}, v{s}, v{s2}', f'v_add_f32 v{q}, v{q}, v{q2}']
    L.append(('vm', f'buffer_store_dwordx2 {vr(sq, 2)}, v1, s[4:7], s{s_st} offen', 'st'))
    return L


def unpack_add_ops(acc, src, t):
    L = []
    for d in range(8):
        L += [f'v_lshlrev_b32 v{t + 2 * (d & 1)}, 16, v{src + d}', f'v_and_b32 v{t + 1 + 2 * (d & 1)}, 0xffff0000, v{src + d}',
              f'v_add_f32 v{acc + 2 * d}, v{acc + 2 * d}, v{t + 2 * (d & 1)}',
              f'v_add_f32 v{acc + 2 * d + 1}, v{acc + 2 * d + 1}, v{t + 1 + 2 * (d & 1)}']
    return L


def gelu_ops(acc, k0, k1, irs, tmp, pk):
    L = []
    for g in range(4):
        idx = [4 * g + e for e in range(4)]
        u = [tmp + e for e in range(4)]
        L += [f'v_mul_f32 v{u[e]}, v{acc + i}, v{acc + i}' for e, i in enumerate(idx)]
        L += [f'v_fma_f32 v{u[e]}, v{u[e]}, v{k1}, v{k0}' for e, i in enumerate(idx)]
        L += [f'v_mul_f32 v{u[e]}, v{u[e]}, v{acc + i}' for e, i in enumerate(idx)]
        L += [f'v_exp_f32 v{u[e]}, v{u[e]}' for e, i in enumerate(idx)]
        L += [f'v_fma_f32 v{u[e]}, v{u[e]}, v{irs}, v{irs}' for e, i in enumerate(idx)]
        L += [f'v_rcp_f32 v{u[e]}, v{u[e]}' for e, i in enumerate(idx)]
        L += [f'v_mul_f32 v{acc + i}, v{acc + i}, v{u[e]}' for e, i in enumerate(idx)]
        L += [f'v_cvt_pk_bf16_f32 v{pk + idx[e] // 2}, v{acc + idx[e]}, v{acc + idx[e] + 1}' for e in (0, 2)]
    return L


def gen_main(a):
    k = K(a, 'main_kernel', 256, na=256, ns=100)
    k.grid = 256; k.lds = LDS_BYTES
    a('s_cmp_ge_u32 s2, 256')
    a('s_cbranch_scc1 main_done')
    a('s_load_dwordx4 s[24:27], s[0:1], 64')
    a('s_load_dwordx2 s[28:29], s[0:1], 80')
    a('s_getreg_b32 s57, hwreg(HW_REG_XCC_ID)')
    a('v_lshrrev_b32 v1, 6, v0')
    a('v_and_b32 v0, 63, v0')
    a('v_readfirstlane_b32 s3, v1')
    a('v_lshlrev_b32 v1, 4, v0')
    a('v_and_b32 v2, 31, v0')
    a('v_lshrrev_b32 v3, 5, v0')
    a('v_and_b32 v5, 15, v0')
    a('v_lshlrev_b32 v5, 2, v5')
    a('v_mov_b32 v6, 0')
    a('v_add_u32 v7, 0x10000, v1')
    a('v_add_u32 v8, 0x20000, v1')
    a('v_mov_b32 v10, 1')
    a('s_and_b32 s57, s57, 7')
    a('s_and_b32 s16, s2, 7')
    a('s_lshr_b32 s17, s2, 3')
    a('s_and_b32 s20, s17, 1')
    a('s_lshl_b32 s21, s16, 1')
    a('s_add_u32 s20, s20, s21')
    a('s_lshr_b32 s21, s17, 1')
    a('s_lshl_b32 s22, s20, 2')
    a('s_add_u32 s22, s22, s3')
    a('s_mov_b32 s18, 0')
    a('s_mov_b32 s19, 0')
    a('s_mov_b32 s50, 0')
    a('s_waitcnt lgkmcnt(0)')
    srd(a, 4, 28, 29, WS_BYTES)
    srd(a, 8, 24, 25, 2048 * 448 * 2)
    srd(a, 12, 26, 27, 256)
    if STAMPS:
        a('s_lshl_b32 s56, s2, 2')
        a('s_add_u32 s56, s56, s3')
        a('s_lshl_b32 s56, s56, 8')
        a(f's_add_u32 s56, s56, {STAMP_BASE}')
        a('s_memrealtime s[60:61]')
        a('s_waitcnt lgkmcnt(0)')
        a('v_mov_b32 v255, s60')
        a.op(('vm', 'buffer_store_dword v255, v6, s[4:7], s56 offen', 'stamp'))
        a('s_add_u32 s56, s56, 4')
    a.stamp()
    a(f's_mul_i32 s62, s21, {84 * KB}')
    a(f's_mul_i32 s63, s3, {21 * KB}')
    a('s_add_u32 s62, s62, s63')
    a(f's_mul_i32 s64, s22, {28 * KB}')
    a(f's_mul_i32 s65, s22, {7 * KB}')
    a('s_lshl_b32 s66, s21, 6')
    a('s_add_u32 s66, s66, s22')
    a('s_lshl_b32 s66, s66, 12')
    a('s_lshl_b32 s67, s22, 7')
    a(f's_add_u32 s67, s67, {FLAGS}')
    for i in range(4):
        a(f'v_mov_b32 v{12 + i}, -1')
        a(f'v_mov_b32 v{16 + i}, 0')
    for L in range(2):
        a(f's_add_u32 s41, s66, {KVF[L]}')
        for u in range(4):
            a.op(('vm', f'buffer_store_dwordx4 v[12:15], v1, s[4:7], s41 offen offset:{u * KB} sc1', 'init'))
    sk = a.label('nz')
    a('s_cmp_ge_u32 s21, 8')
    a(f's_cbranch_scc1 {sk}')
    a('s_lshl_b32 s41, s21, 13')
    a('s_add_u32 s41, s41, s67')
    a('s_mov_b64 exec, 0xff')
    a('buffer_store_dwordx4 v[16:19], v1, s[4:7], s41 offen sc1')
    a('s_mov_b64 exec, -1')
    a(f'{sk}:')
    a.vm.append('init')
    a.ops(flat(dma_ops(21, 62, 63, WQKV_F, L_A, 'wq')))

    a('layer_loop:')
    a('s_cmp_eq_u32 s18, 0')
    for (sr, v0, v1) in ((70, XF[0], XF[2]), (71, ST[0], ST[2]), (72, KVF[0], KVF[1]), (73, OF[0], OF[1]),
                         (74, XF[1], XF[3]), (75, ST[1], ST[3]), (76, HF[0], HF[1]), (77, 0, 4 * 8192)):
        a(f's_mov_b32 s40, {v1:#x}')
        a(f's_cselect_b32 s{sr}, {v0:#x}, s40')
    a('s_add_u32 s77, s77, s67')
    a('s_cmp_eq_u32 s18, 0')
    a('s_cbranch_scc1 qkv_go')
    a(f's_add_u32 s42, s67, {T_X2 * 8192}')
    saved_vm = list(a.vm)
    poll_flags(a, 42, 0x3fff, 'x2')
    a('qkv_go:')
    a.vm = saved_vm
    a.stamp()

    X = 12
    AK, AV, AQ = 124, 140, 156
    W = 172
    SB = 196
    EXW = 224
    EXT = 236
    NM, VAR, RSTD, IRS, T0, T1, RQ = 240, 241, 242, 243, 244, 245, 246
    a('s_add_u32 s43, s64, s70')
    a('s_add_u32 s44, s65, s71')
    a(f's_mul_i32 s45, s21, {3 * KB}')
    xl = ld_ops(28, X, 43, 0, lambda i: f'x{i}')
    stl = ld_ops(7, SB, 44, 0, lambda i: 'stats')
    exl = ld_ops(3, EXW, 45, EXQ, lambda i: 'exw', sc='')
    D = 12
    a.ops(flat(xl[:4] + stl + xl[4:D] + exl))
    a.op(('wvm', 'wq'))
    a('s_barrier')
    sk = a.label('reg')
    a('s_add_u32 s40, s18, s3')
    a('s_cmp_eq_u32 s40, 0')
    a(f's_cbranch_scc0 {sk}')
    a('s_lshl_b32 s40, s57, 3')
    a('s_lshl_b64 s[52:53], 1, s40')
    a('v_mov_b32 v248, s52')
    a('v_mov_b32 v249, s53')
    a('s_lshl_b32 s41, s16, 5')
    a('s_mov_b64 exec, 1')
    a('buffer_atomic_add_x2 v[248:249], v6, s[12:15], s41 offen sc1')
    a('s_mov_b64 exec, -1')
    a(f'{sk}:')
    a.stamp()
    NS = 3

    def rdkv(ks):
        b = W + 8 * (ks % NS)
        return [lds_rd(b, L_A + (ks * 3 + 1) * KB, f'w{ks}'), lds_rd(b + 4, L_A + (ks * 3 + 2) * KB, f'w{ks}')]
    main = rdkv(0) + rdkv(1)
    for ks in range(28):
        if ks + 2 < 28:
            main += rdkv(ks + 2)
        if ks + D < 28:
            main += xl[ks + D]
        main.append(('w2', f'x{ks}', f'w{ks}'))
        b = W + 8 * (ks % NS); x = vr(X + 4 * ks)
        main.append(f'{MF} {vr(AK, 16)}, {vr(b)}, {x}, {"0" if ks == 0 else vr(AK, 16)}')
        main.append(f'{MF} {vr(AV, 16)}, {x}, {vr(b + 4)}, {"0" if ks == 0 else vr(AV, 16)}')
    side = [('wvm', 'stats')] + stats_ops(SB, NM, VAR, T0, T1)
    side += [f'v_add_f32 v{VAR}, {f32(EPS)}, v{VAR}', f'v_rsq_f32 v{RSTD}, v{VAR}', f'v_sqrt_f32 v{IRS}, v{VAR}',
             f'v_mul_f32 v{RQ}, {f32(28 ** -0.5 * LOG2E)}, v{RSTD}']
    side += exfrag_ops(EXT, NM, IRS, T0, T1)
    VA = SB
    side += ['s_lshl_b32 s46, s3, 13', f's_add_u32 s46, s46, {L_KV}',
             f'v_lshl_add_u32 v{T0}, v2, 2, s46',
             ('ds', f'ds_write_b32 v{T0}, v{RSTD}', 'rs'),
             f'v_lshl_add_u32 v{T1}, v3, 4, s46',
             ('wds', 'rs')]
    side += [('ds', f'ds_read_b128 {vr(VA + 4 * g)}, v{T1} offset:{32 * g}', 'va') for g in range(4)]
    a.ops(weave(main, [(side, 3, 16)]))
    a.op(('wvm', 'exw'))
    a(f'{MF} {vr(AK, 16)}, {vr(EXW + 4)}, {vr(EXT)}, {vr(AK, 16)}')
    a(f'{MF} {vr(AV, 16)}, {vr(EXT)}, {vr(EXW + 8)}, {vr(AV, 16)}')
    a.stamp()
    KO, VO = 212, 220
    KO, VO = 196 + 16, 248
    VO = 228
    NQ = 6
    WQ = W

    def rdq(ks):
        return lds_rd(WQ + 4 * (ks % NQ), L_A + (ks * 3) * KB, f'q{ks}')
    main = [rdq(i) for i in range(NQ - 1)]
    for ks in range(28):
        if ks + NQ - 1 < 28:
            main.append(rdq(ks + NQ - 1))
        main.append(('wds', f'q{ks}'))
        main.append(f'{MF} {vr(AQ, 16)}, {vr(WQ + 4 * (ks % NQ))}, {vr(X + 4 * ks)}, {"0" if ks == 0 else vr(AQ, 16)}')
    main.append(f'{MF} {vr(AQ, 16)}, {vr(EXW)}, {vr(EXT)}, {vr(AQ, 16)}')
    side = [f'v_mul_f32 v{AK + i}, v{RSTD}, v{AK + i}' for i in range(16)]
    side += [f'v_cvt_pk_bf16_f32 v{KO + i}, v{AK + 2 * i}, v{AK + 2 * i + 1}' for i in range(8)]
    side += ['s_add_u32 s47, s66, s72',
             ('vm', f'buffer_store_dwordx4 {vr(KO)}, v1, s[4:7], s47 offen sc1', 'kv'),
             ('vm', f'buffer_store_dwordx4 {vr(KO + 4)}, v1, s[4:7], s47 offen offset:1024 sc1', 'kv'),
             ('wds', 'va')]
    side += [f'v_mul_f32 v{AV + i}, v{VA + i}, v{AV + i}' for i in range(16)]
    side += [f'v_cvt_pk_bf16_f32 v{VO + i}, v{AV + 2 * i}, v{AV + 2 * i + 1}' for i in range(8)]
    side += [('vm', f'buffer_store_dwordx4 {vr(VO)}, v1, s[4:7], s47 offen offset:2048 sc1', 'kv'),
             ('vm', f'buffer_store_dwordx4 {vr(VO + 4)}, v1, s[4:7], s47 offen offset:3072 sc1', 'kv')]
    side += ['s_add_u32 s48, s3, 8', 's_cmp_eq_u32 s3, 3', 's_cselect_b32 s48, 6, s48', 's_lshl_b32 s48, s48, 12',
             f's_add_u32 s48, s48, {L_KV}', f'v_add_u32 v{T0}, s48, v1',
             ('ds', f'ds_write_b128 v{T0}, {vr(KO)}', 'kvw'), ('ds', f'ds_write_b128 v{T0}, {vr(KO + 4)} offset:1024', 'kvw'),
             ('ds', f'ds_write_b128 v{T0}, {vr(VO)} offset:2048', 'kvw'), ('ds', f'ds_write_b128 v{T0}, {vr(VO + 4)} offset:3072', 'kvw')]
    a.ops(weave(main, [(side, 4, 1)]))
    a.stamp()
    Q = 236
    S = 12
    H = 172
    O = 156
    M, T, NEG, Z0, TT = 244, 245, 247, 248, 249
    mask = [f's_mov_b32 s46, {f32(-1e30)}', f'v_mov_b32 v{NEG}, s46', 's_cmp_ge_u32 s22, 8', 's_cselect_b32 s47, 0, s46',
            f'v_mov_b32 v{Z0}, s47', f'v_lshlrev_b32 v{T}, 2, v3', f'v_sub_u32 v{T}, v2, v{T}']
    for i in range(16):
        c = 8 * (i >> 2) + (i & 3)
        mask += [f'v_cmp_le_i32 vcc, {c}, v{T}', f'v_cndmask_b32_e64 v{S + 128 + i}, v{NEG}, 0, vcc',
                 f'v_cndmask_b32 v{S + i}, v{Z0}, v{NEG}, vcc']
    for j in range(1, 8):
        mask += [f's_cmp_ge_u32 s22, {8 - j}', 's_cselect_b32 s47, 0, s46']
        mask += [f'v_mov_b32 v{S + 16 * j + i}, s47' for i in range(16)]
    sk = a.label('regok')
    a('s_cmp_eq_u32 s18, 0')
    a(f's_cbranch_scc0 {sk}')
    lp = a.label('regp'); lx = a.label('regx')
    a('s_add_u32 s40, s16, 7')
    a('s_and_b32 s40, s40, 7')
    a('s_lshl_b32 s40, s40, 5')
    a('s_lshl_b32 s41, s16, 5')
    a(f'{lp}:')
    a('s_add_u32 s50, s50, 1')
    a('s_cmp_gt_u32 s50, 0x400000')
    a(f's_cbranch_scc1 {lx}')
    a(f'buffer_load_dwordx2 v[{H}:{H + 1}], v6, s[12:15], s41 offen sc1')
    a(f'buffer_load_dwordx2 v[{H + 2}:{H + 3}], v6, s[12:15], s40 offen sc1')
    a('s_waitcnt vmcnt(0)')
    a(f'v_sad_u8 v{H + 4}, v{H}, 0, 0')
    a(f'v_sad_u8 v{H + 4}, v{H + 1}, 0, v{H + 4}')
    a(f'v_sad_u8 v{H + 4}, v{H + 2}, 0, v{H + 4}')
    a(f'v_sad_u8 v{H + 4}, v{H + 3}, 0, v{H + 4}')
    a(f'v_readfirstlane_b32 s42, v{H + 4}')
    a('s_cmp_eq_u32 s42, 64')
    a(f's_cbranch_scc0 {lp}')
    a(f'{lx}:')
    a(f'v_readfirstlane_b32 s52, v{H}')
    a(f'v_readfirstlane_b32 s53, v{H + 1}')
    a('s_lshl_b32 s40, s57, 3')
    a('s_lshl_b64 s[54:55], 32, s40')
    a('s_cmp_eq_u64 s[52:53], s[54:55]')
    a('s_cselect_b32 s19, 0, 1')
    if FORCE_SLOW:
        a('s_mov_b32 s19, 1')
    a(f'{sk}:')
    for i in range(16):
        a(f'v_mul_f32 v{AQ + i}, v{RQ}, v{AQ + i}')
    for i in range(8):
        a(f'v_cvt_pk_bf16_f32 v{Q + i}, v{AQ + 2 * i}, v{AQ + 2 * i + 1}')
    a('s_lshl_b32 s42, s20, 2')
    a('s_lshl_b32 s43, s3, 1')
    a('s_add_u32 s42, s42, s43')
    a('s_sub_i32 s42, s42, 8')
    hz = a.label('hz'); hl = a.label('hl'); hd = a.label('hd');
    a('s_cmp_lt_i32 s42, 0')
    a(f's_cbranch_scc1 {hz}')
    a('s_lshl_b32 s43, s21, 6')
    a('s_add_u32 s43, s43, s42')
    a('s_lshl_b32 s43, s43, 12')
    a('s_add_u32 s43, s43, s72')
    a('s_add_u32 s44, s43, 4096')
    for u in range(8):
        a(f'buffer_load_dwordx4 {vr(H + 4 * u)}, v1, s[4:7], s{43 + (u >> 2)} offen offset:{(u & 3) * KB} sc1')
    a.ops(mask)
    a(f's_branch {hl}')
    a(f'{hz}:')
    for r in range(32):
        a(f'v_mov_b32 v{H + r}, 0')
    a.ops(mask)
    a(f's_branch {hd}')
    hr = a.label('hr')
    a(f'{hr}:')
    a('s_add_u32 s50, s50, 1')
    a('s_cmp_gt_u32 s50, 0x400000')
    a(f's_cbranch_scc1 {hd}')
    a('s_sleep 2')
    for u in range(8):
        a(f'buffer_load_dwordx4 {vr(H + 4 * u)}, v1, s[4:7], s{43 + (u >> 2)} offen offset:{(u & 3) * KB} sc1')
    a(f'{hl}:')
    a('s_waitcnt vmcnt(0)')
    a(f'v_max_u32 v{TT}, v{H}, v{H + 1}')
    for i in range(2, 32, 2):
        a(f'v_max3_u32 v{TT}, v{H + i}, v{H + i + 1}, v{TT}')
    a(f'v_cmp_eq_u32 vcc, -1, v{TT}')
    a('s_cmp_eq_u64 vcc, 0')
    a(f's_cbranch_scc0 {hr}')
    a(f'{hd}:')
    a.drain()
    a('s_lshl_b32 s42, s3, 13')
    a(f's_add_u32 s42, s42, {L_KV}')
    a(f'v_add_u32 v{TT}, s42, v1')
    for u in range(8):
        a(f'ds_write_b128 v{TT}, {vr(H + 4 * u)} offset:{u * KB}')
    for s in range(2):
        a(f'{MF} {vr(S + 128, 16)}, {vr(KO + 4 * s)}, {vr(Q + 4 * s)}, {vr(S + 128, 16)}')
    a('s_waitcnt lgkmcnt(0)')
    a('s_barrier')
    a.stamp()
    a('s_min_u32 s23, s21, 13')
    a(f's_mul_i32 s68, s23, {112 * KB}')
    a('s_add_u32 s69, s68, s63')
    a('s_lshl_b32 s58, s23, 15')
    a('s_lshl_b32 s59, s3, 13')
    a('s_add_u32 s58, s58, s59')
    bg = dma_ops(8, 58, 59, WO_F, L_WO, 'wo') + dma_ops(21, 69, 63, W1_F, L_A, 'w1a')
    a('s_lshl_b32 s42, s3, 12')
    a(f's_add_u32 s42, s42, {L_KV}')
    KVB = 250
    a(f'v_add_u32 v{KVB}, s42, v1')

    def rdk(j):
        b = H + 8 * (j % 4)
        return [('ds', f'ds_read_b128 {vr(b + 4 * s)}, v{KVB} offset:{j * 4096 + s * KB}', f'k{j}') for s in range(2)]

    def rdv(j):
        b = H + 8 * (j % 4)
        return [('ds', f'ds_read_b128 {vr(b + 4 * s)}, v{KVB} offset:{j * 4096 + 2048 + s * KB}', f'v{j}') for s in range(2)]
    body = rdk(0) + rdk(1) + rdk(2)
    mx = lambda jj: [f'v_max3_f32 v{M}, v{S + 16 * jj + i}, v{S + 16 * jj + i + 1}, v{M}' for i in range(0, 16, 2)]
    first = [f'v_max_f32 v{M}, v{S + 128}, v{S + 129}'] + mx(8)[1:]
    for j in range(8):
        if j + 3 < 8:
            body += rdk(j + 3)
        body.append(('wds', f'k{j}'))
        b = H + 8 * (j % 4)
        for s in range(2):
            body.append(f'{MF} {vr(S + 16 * j, 16)}, {vr(b + 4 * s)}, {vr(Q + 4 * s)}, {vr(S + 16 * j, 16)}')
        body += first if j == 0 else mx(j - 1)
    body += rdv(0) + rdv(1) + rdv(2)
    body += mx(7)
    body += [f'v_mov_b32 v{T}, v{M}', f'v_permlane32_swap_b32 v{M}, v{T}', f'v_max_f32 v{M}, v{M}, v{T}']
    order = [8, 0, 1, 2, 3, 4, 5, 6, 7]
    for n, j in enumerate(order):
        b = S + 16 * j
        body += [f'v_sub_f32 v{b + i}, v{b + i}, v{M}' for i in range(16)]
        body += [f'v_exp_f32 v{b + i}, v{b + i}' for i in range(16)]
        body += [f'v_cvt_pk_bf16_f32 v{b + i}, v{b + 2 * i}, v{b + 2 * i + 1}' for i in range(8)]
        if j < 8:
            body.append(('wds', f'v{j}'))
        for s in range(2):
            vf = vr(VO + 4 * s) if j == 8 else vr(H + 8 * (j % 4) + 4 * s)
            body.append(f'{MF} {vr(O, 16)}, {vf}, {vr(b + 4 * s)}, {"0" if (n == 0 and s == 0) else vr(O, 16)}')
        if j < 8 and j + 3 < 8:
            body += rdv(j + 3)
    a.ops(weave_n(body, bg, 14))
    PK = 172
    a(f'v_mov_b32 v{T}, v{O + 12}')
    a(f'v_mov_b32 v{TT}, v{O + 12}')
    a(f'v_permlane32_swap_b32 v{T}, v{TT}')
    a(f'v_rcp_f32 v{TT}, v{TT}')
    a('v_cmp_eq_u32 vcc, 0, v3')
    a(f'v_cndmask_b32 v{T}, 0, v{TT}, vcc')
    for i in range(16):
        a(f'v_mul_f32 v{O + i}, v{T if i >= 12 else TT}, v{O + i}')
    for i in range(8):
        a(f'v_cvt_pk_bf16_f32 v{PK + i}, v{O + 2 * i}, v{O + 2 * i + 1}')
    a('s_lshl_b32 s42, s22, 4')
    a('s_add_u32 s42, s42, s21')
    a('s_lshl_b32 s42, s42, 11')
    a('s_add_u32 s42, s42, s73')
    a.op(('vm', f'buffer_store_dwordx4 {vr(PK)}, v1, s[4:7], s42 offen', 'st'))
    a.op(('vm', f'buffer_store_dwordx4 {vr(PK + 4)}, v1, s[4:7], s42 offen offset:1024', 'st'))
    a('s_lshl_b32 s43, s21, 2')
    a('s_add_u32 s43, s43, s77')
    a.stamp()
    publish_flag(a, 43)
    a.drain(vm=False, ds=True)
    a('s_barrier')
    a.stamp()
    a('s_cmp_ge_u32 s21, 14')
    a('s_cbranch_scc1 next_layer')
    a(f's_mul_i32 s59, s3, {7 * KB}')
    a('s_add_u32 s58, s68, s59')
    a.ops(flat(dma_ops(7, 58, 59, W1_F + 84 * KB, L_KV, 'w1b')))
    OFR = 12; ACC = 140; WW = 156; R = 172; PK = 180; SQ = 188; T = 192
    a('s_mul_i32 s44, s22, 14')
    a('s_add_u32 s44, s44, s21')
    a('s_lshl_b32 s44, s44, 11')
    a('s_add_u32 s45, s44, s70')
    a.ops(flat(ld_ops(2, R, 45, 0, lambda i: 'res')))
    poll_flags(a, 77, 0xffff, 'o')
    a.stamp()
    a('s_lshl_b32 s43, s22, 15')
    a('s_add_u32 s43, s43, s73')
    ol = ld_ops(32, OFR, 43, 0, lambda i: f'o{i}')
    D = 14; NB = 4
    main = flat(ol[:D]) + [lds_rd(WW + 4 * u, L_WO + u * KB, f'ww{u}') for u in range(NB - 1)]
    for ks in range(32):
        n = ks + NB - 1
        if n < 32:
            main.append(lds_rd(WW + 4 * (n % NB), L_WO + n * KB, f'ww{n}'))
        if ks + D < 32:
            main += ol[ks + D]
        main.append(('w2', f'o{ks}', f'ww{ks}'))
        main.append(f'{MF} {vr(ACC, 16)}, {vr(WW + 4 * (ks % NB))}, {vr(OFR + 4 * ks)}, {"0" if ks == 0 else vr(ACC, 16)}')
    a.ops(main)
    a.stamp()
    a('s_add_u32 s45, s44, s74')
    a('s_lshr_b32 s46, s21, 1')
    a('s_lshl_b32 s46, s46, 10')
    a('s_and_b32 s47, s21, 1')
    a('s_lshl_b32 s47, s47, 3')
    a('s_add_u32 s46, s46, s47')
    a('s_add_u32 s46, s46, s65')
    a('s_add_u32 s46, s46, s75')
    a.ops(unpack_add_ops(ACC, R, T) + xtile_out_ops(ACC, PK, SQ, 45, 46))
    a('s_lshl_b32 s43, s21, 2')
    a('s_add_u32 s43, s43, s77')
    a(f's_add_u32 s43, s43, {T_X1 * 8192}')
    publish_flag(a, 43)
    a('s_barrier')
    a.stamp()
    X = 12
    AC = [124, 140, 156, 172]
    W = 188
    SB = 212
    EXT = 240
    NM, VAR, RS, IRS, T0, T1, K0, K1 = 244, 245, 246, 247, 248, 249, 250, 251
    EXA = 224
    a('s_lshl_b32 s45, s21, 12')
    a.ops(flat(ld_ops(4, EXA, 45, EX1, lambda i: 'exw', reg=ar, sc='')))
    a(f's_add_u32 s42, s77, {T_X1 * 8192}')
    poll_flags(a, 42, 0x3fff, 'x1')
    a.stamp()
    a('s_add_u32 s43, s64, s74')
    a('s_add_u32 s44, s65, s75')
    xl = ld_ops(28, X, 43, 0, lambda i: f'x{i}')
    stl = ld_ops(7, SB, 44, 0, lambda i: 'stats')
    D = 12
    w1off = lambda t, ks: (L_A + (t * 28 + ks) * KB) if t < 3 else (L_KV + ks * KB)

    def rd2(t, ks):
        b = W + 8 * (ks % 3)
        return [lds_rd(b, w1off(t, ks), f'w{ks}'), lds_rd(b + 4, w1off(t + 1, ks), f'w{ks}')]
    main = flat(xl[:4] + stl + xl[4:D]) + rd2(0, 0) + rd2(0, 1)
    for ks in range(28):
        if ks + 2 < 28:
            main += rd2(0, ks + 2)
        if ks + D < 28:
            main += xl[ks + D]
        main.append(('w2', f'x{ks}', f'w{ks}'))
        b = W + 8 * (ks % 3)
        for t in range(2):
            main.append(f'{MF} {vr(AC[t], 16)}, {vr(b + 4 * t)}, {vr(X + 4 * ks)}, {"0" if ks == 0 else vr(AC[t], 16)}')
    C0 = -2 * math.sqrt(2 / math.pi) * LOG2E
    side = [('wvm', 'stats')] + stats_ops(SB, NM, VAR, T0, T1)
    side += [f'v_add_f32 v{T0}, {f32(EPS)}, v{VAR}', f'v_rcp_f32 v{T1}, v{T0}',
             f'v_mul_f32 v{T1}, v{T1}, v{VAR}', f'v_add_f32 v{T1}, {f32(EPS)}, v{T1}',
             f'v_mul_f32 v{T0}, v{T0}, v{T1}',
             f'v_rsq_f32 v{RS}, v{T0}', f'v_sqrt_f32 v{IRS}, v{T0}',
             f'v_mul_f32 v{K0}, {f32(C0)}, v{RS}', f'v_mul_f32 v{T0}, v{RS}, v{RS}',
             f'v_mul_f32 v{K1}, {f32(0.044715)}, v{K0}', f'v_mul_f32 v{K1}, v{K1}, v{T0}']
    side += exfrag_ops(EXT, NM, IRS, T0, T1)
    a.ops(weave(main, [(side, 3, 16)]))
    for t in range(2):
        a(f'{MF} {vr(AC[t], 16)}, {ar(EXA + 4 * t)}, {vr(EXT)}, {vr(AC[t], 16)}')
    a.stamp()
    TMP = 212; PKS = [216, 224, 232, 216]
    a('s_mul_i32 s46, s22, 112')
    a('s_lshl_b32 s47, s21, 3')
    a('s_add_u32 s46, s46, s47')
    a('s_lshl_b32 s46, s46, 10')
    a('s_add_u32 s46, s46, s76')
    a('s_add_u32 s47, s46, 4096')
    a('s_lshr_b32 s78, s17, 2')
    a('s_lshl_b32 s78, s78, 1')
    a('s_and_b32 s79, s17, 3')
    a('s_lshl_b32 s79, s79, 1')
    a('s_lshl_b32 s40, s16, 3')
    a('s_add_u32 s79, s79, s40')
    a(f's_mul_i32 s80, s3, {28 * KB}')
    a(f's_mul_i32 s81, s78, {112 * KB}')
    a('s_add_u32 s81, s81, s80')
    w2l = []
    l0 = ld_ops(28, 0, 81, W2_F, lambda i: 'w2', reg=ar, sc='', st='s49')
    l1 = ld_ops(28, 112, 81, W2_F + 112 * KB, lambda i: 'w2', reg=ar, sc='', st='s49')
    for i in range(28):
        w2l += [l0[i], l1[i]]

    def hstore(t):
        sr = 46 if t < 2 else 47
        return [('vm', f'buffer_store_dwordx4 {vr(PKS[t])}, v1, s[4:7], s{sr} offen offset:{(2 * t) * KB % 4096}', 'st'),
                ('vm', f'buffer_store_dwordx4 {vr(PKS[t] + 4)}, v1, s[4:7], s{sr} offen offset:{(2 * t + 1) * KB % 4096}', 'st')]
    NQ = 6
    main = []
    seq = [(t, ks) for t in (2, 3) for ks in range(28)]
    rd1 = lambda n: lds_rd(W + 4 * (n % NQ), w1off(*seq[n]), f'u{n}')
    main += [rd1(n) for n in range(NQ - 1)]
    for n, (t, ks) in enumerate(seq):
        if n + NQ - 1 < len(seq):
            main.append(rd1(n + NQ - 1))
        main.append(('wds', f'u{n}'))
        main.append(f'{MF} {vr(AC[t], 16)}, {vr(W + 4 * (n % NQ))}, {vr(X + 4 * ks)}, {"0" if ks == 0 else vr(AC[t], 16)}')
        if ks == 27:
            main.append(f'{MF} {vr(AC[t], 16)}, {ar(EXA + 4 * t)}, {vr(EXT)}, {vr(AC[t], 16)}')
    side = []
    for t in range(2):
        side += gelu_ops(AC[t], K0, K1, IRS, TMP, PKS[t]) + hstore(t)
    a.ops(weave(main, [(side, 4.3, 1), (w2l[:28], 0.5, 0)]))
    a.stamp()
    tail = []
    for t in (2, 3):
        tail += gelu_ops(AC[t], K0, K1, IRS, TMP, PKS[t]) + hstore(t)
    a.ops(weave_n(tail, w2l[28:], 7))
    a('s_lshl_b32 s43, s21, 2')
    a('s_add_u32 s43, s43, s77')
    a(f's_add_u32 s43, s43, {T_H * 8192}')
    a.stamp()
    publish_flag(a, 43)
    a('s_barrier')
    a.stamp()
    sk = a.label('nowq')
    a('s_cmp_eq_u32 s18, 0')
    a(f's_cbranch_scc0 {sk}')
    vm_save = list(a.vm)
    a.ops(flat(dma_ops(17, 62, 63, WQKV_F, L_A, 'wq')))
    a.vm = vm_save
    a(f'{sk}:')
    a('s_lshl_b32 s42, s79, 7')
    a('s_sub_u32 s43, s77, s67')
    a('s_add_u32 s42, s42, s43')
    a(f's_add_u32 s42, s42, {FLAGS + T_H * 8192}')
    a('v_bfe_u32 v11, v0, 4, 1')
    a('v_lshl_add_u32 v5, v11, 7, v5')
    poll_flags(a, 42, 0x3fff3fff, 'h')
    a('v_and_b32 v5, 63, v5')
    a.stamp()
    a(f's_mul_i32 s43, s79, {112 * KB}')
    a('s_add_u32 s43, s43, s80')
    a('s_add_u32 s43, s43, s76')
    RB = 12; DD = 14
    AC = [124, 140, 156, 172]
    R = 188; BB = 196
    h0 = ld_ops(28, 0, 43, 0, lambda i: f'h{i}')
    h1 = ld_ops(28, 0, 43, 112 * KB, lambda i: f'h{i}')

    def hld(ks):
        b = RB + 8 * (ks % DD)
        return [f's_add_u32 s41, s43, {ks * KB}', ('vm', f'buffer_load_dwordx4 {vr(b)}, v1, s[4:7], s41 offen sc1', f'h{ks}'),
                f's_add_u32 s41, s43, {(112 + ks) * KB}', ('vm', f'buffer_load_dwordx4 {vr(b + 4)}, v1, s[4:7], s41 offen sc1', f'h{ks}')]
    a('s_lshr_b32 s82, s3, 1')
    a('s_add_u32 s82, s82, s79')
    a('s_and_b32 s83, s3, 1')
    a('s_add_u32 s83, s83, s78')
    a('s_mul_i32 s44, s82, 14')
    a('s_add_u32 s44, s44, s83')
    a('s_lshl_b32 s44, s44, 11')
    a('s_add_u32 s45, s44, s74')
    a('s_lshl_b32 s46, s83, 7')
    a(f's_add_u32 s46, s46, {B2F}')
    a('v_lshlrev_b32 v11, 4, v3')
    extra = flat(ld_ops(2, R, 45, 0, lambda i: 'res'))
    extra += [('vm', f'buffer_load_dwordx4 {vr(BB + 4 * g)}, v11, s[4:7], s46 offen offset:{32 * g}', 'res') for g in range(4)]
    main = []
    for ks in range(DD - 1):
        main += hld(ks)
    for ks in range(28):
        if ks + DD - 1 < 28:
            main += hld(ks + DD - 1)
        if ks == 15:
            main += extra
        main.append(('wvm', f'h{ks}'))
        b = RB + 8 * (ks % DD)
        for ti in range(2):
            for ci in range(2):
                acc = AC[2 * ti + ci]
                main.append(f'{MF} {vr(acc, 16)}, {ar(112 * ci + 4 * ks)}, {vr(b + 4 * ti)}, {"0" if ks == 0 else vr(acc, 16)}')
    a.ops(main)
    a.stamp()
    RED = 80 * KB
    for d in range(1, 4):
        a(f's_add_u32 s40, s3, {d}')
        a('s_and_b32 s40, s40, 3')
        a(f's_mul_i32 s41, s40, {12 * KB}')
        a(f's_add_u32 s41, s41, {RED + (3 - d) * 4 * KB}')
        a(f'v_add_u32 v{212 + d}, s41, v1')
    lab = [a.label('rw') for _ in range(4)]; ldone = a.label('rwd')
    for w in range(1, 4):
        a(f's_cmp_eq_u32 s3, {w}')
        a(f's_cbranch_scc1 {lab[w]}')
    P = 12
    for w in range(4):
        if w:
            a(f'{lab[w]}:')
        for d in range(1, 4):
            t = (w + d) & 3
            for g in range(4):
                a(f'ds_write_b128 v{212 + d}, {vr(AC[t] + 4 * g)} offset:{g * KB}')
        for i in range(16):
            a(f'v_mov_b32 v{P + i}, v{AC[w] + i}')
        if w < 3:
            a(f's_branch {ldone}')
    a(f'{ldone}:')
    a('s_waitcnt lgkmcnt(0)')
    a('s_barrier')
    a(f's_mul_i32 s41, s3, {12 * KB}')
    a(f's_add_u32 s41, s41, {RED}')
    a('v_add_u32 v212, s41, v1')
    for r in range(3):
        for g in range(4):
            a.op(('ds', f'ds_read_b128 {vr(P + 16 + 16 * r + 4 * g)}, v212 offset:{r * 4 * KB + g * KB}', f'r{r}'))
    a.op(('wvm', 'res'))
    for i in range(16):
        a(f'v_add_f32 v{P + i}, v{P + i}, v{BB + i}')
    a.ops(unpack_add_ops(P, R, 216))
    for r in range(3):
        a.op(('wds', f'r{r}'))
        for i in range(16):
            a(f'v_add_f32 v{P + i}, v{P + i}, v{P + 16 + 16 * r + i}')
    PK = 84; SQ = 92
    a('s_cmp_eq_u32 s18, 0')
    a('s_cbranch_scc0 final_out')
    a(f's_add_u32 s45, s44, {XF[2]}')
    a('s_lshr_b32 s46, s83, 1')
    a('s_lshl_b32 s46, s46, 10')
    a('s_and_b32 s47, s83, 1')
    a('s_lshl_b32 s47, s47, 3')
    a('s_add_u32 s46, s46, s47')
    a(f's_mul_i32 s47, s82, {7 * KB}')
    a('s_add_u32 s46, s46, s47')
    a(f's_add_u32 s46, s46, {ST[2]}')
    a.ops(xtile_out_ops(P, PK, SQ, 45, 46))
    a('s_lshl_b32 s43, s82, 7')
    a('s_lshl_b32 s42, s83, 2')
    a('s_add_u32 s43, s43, s42')
    a(f's_add_u32 s43, s43, {FLAGS + T_X2 * 8192}')
    a.stamp()
    publish_flag(a, 43)
    a('s_barrier')
    a.ops(flat(dma_ops(4, 62, 63, WQKV_F + 17 * KB, L_A + 17 * KB, 'wq')))
    a('s_mov_b32 s18, 1')
    a('s_branch layer_loop')
    a('next_layer:')
    a('s_cmp_eq_u32 s18, 0')
    a('s_cbranch_scc0 main_done')
    a.vm = []
    a.ops(flat(dma_ops(21, 62, 63, WQKV_F, L_A, 'wq')))
    a('s_mov_b32 s18, 1')
    a('s_branch layer_loop')
    a('final_out:')
    for i in range(8):
        a(f'v_cvt_pk_bf16_f32 v{PK + i}, v{P + 2 * i}, v{P + 2 * i + 1}')
    a(f'v_permlane32_swap_b32 v{PK}, v{PK + 2}')
    a(f'v_permlane32_swap_b32 v{PK + 1}, v{PK + 3}')
    a(f'v_permlane32_swap_b32 v{PK + 4}, v{PK + 6}')
    a(f'v_permlane32_swap_b32 v{PK + 5}, v{PK + 7}')
    a('v_mul_u32_u24 v11, 896, v2')
    a('v_lshl_add_u32 v11, v3, 4, v11')
    a(f's_mul_i32 s42, s82, {32 * 896}')
    a('s_lshl_b32 s43, s83, 6')
    a('s_add_u32 s42, s42, s43')
    a(f'buffer_store_dwordx4 {vr(PK)}, v11, s[8:11], s42 offen')
    a(f'buffer_store_dwordx4 {vr(PK + 4)}, v11, s[8:11], s42 offen offset:32')
    if STAMPS:
        a.drain()
        a.stamp()
        a('s_memrealtime s[60:61]')
        a('s_waitcnt lgkmcnt(0)')
        a('v_mov_b32 v255, s60')
        a('buffer_store_dword v255, v6, s[4:7], s56 offen')
    a('main_done:')
    a('s_endpgm')
    return k


def main():
    a = G()
    ks = [gen_prep(a), gen_main(a)]
    body = a.finish()
    hdr = open(f'cdna_kernels/{NAME}.s.ref').read().split('; Override')[0]
    out = hdr
    for k in ks:
        out += f'; @launch kernel={k.name} grid=({k.grid},1,1) block=(256,1,1) lds={k.lds}\n'
    out += '.amdgcn_target "amdgcn-amd-amdhsa--gfx950"\n.text\n' + body
    out += '.section .rodata,"a"\n'
    for k in ks:
        out += '.p2align 6\n' + k.desc()
    path = sys.argv[1] if len(sys.argv) > 1 else f'v2.s'
    open(path, 'w').write(out)
    print('wrote', path, len(out))


if __name__ == '__main__':
    main()
```
